```python
import torch

def _softmax(x, axis=-1):
    return torch.softmax(x, dim=axis)
def _gelu(x):
    return torch.nn.functional.gelu(x, approximate="tanh")
def _silu(x):
    return torch.nn.functional.silu(x)
def _sigmoid(x):
    return torch.sigmoid(x)
def _layernorm(x, axis=-1, eps=1e-5):
    m = x.mean(dim=axis, keepdim=True)
    v = x.var(dim=axis, keepdim=True, unbiased=False)
    return (x - m) / torch.sqrt(v + eps)
def _scatter_add(tgt, idx, src, axis=0):
    return tgt.clone().index_add_(axis, idx, src)
def _segment_sum(src, seg, n):
    out = torch.zeros((n,) + src.shape[1:], dtype=src.dtype)
    return out.index_add_(0, seg, src)
def _pad(x, pw):
    flat = tuple(v for pair in reversed(pw) for v in pair)
    return torch.nn.functional.pad(x, flat)

kernel_name = 'parallel_sum__ssm_conv_s4d__dense_activation_squared_relu__prompt'

def setup_inputs():

    _w = (lambda a: (lambda t: t.to(torch.bfloat16) if t.is_floating_point() else t)(torch.as_tensor(a)))
    def _A_setup():
        Bsz, L, D, N = 1, 2048, 512, 128
        return {
            "u": _w((lambda *s: torch.randn(*s, dtype=torch.bfloat16) * 0.05)(Bsz, L, D)),
            "log_A_real": _w((lambda *s: torch.randn(*s, dtype=torch.bfloat16) * 3.2)(D, N) * 0.5),
            "A_imag": _w((lambda *s: torch.randn(*s, dtype=torch.bfloat16) * 0.2)(D, N) * 3.14),
            "C_real": _w((lambda *s: torch.randn(*s, dtype=torch.bfloat16) * 3.2)(D, N) / N ** 0.5),
            "C_imag": _w((lambda *s: torch.randn(*s, dtype=torch.bfloat16) * 3.2)(D, N) / N ** 0.5),
            "log_dt": _w((lambda *s: torch.randn(*s, dtype=torch.bfloat16) * 0.2)(D) * 0.5 - 4.0),
            "D_skip": _w((lambda *s: torch.randn(*s, dtype=torch.bfloat16) * 0.4)(D)),
        }
    _A_in = _A_setup()

    def _B_setup():
        B, S, D, F = 1, 2048, 512, 1376
        return {
            "x": _w((lambda *s: torch.randn(*s, dtype=torch.bfloat16) * 0.05)(B, S, D)),
            "w1": _w((lambda *s: torch.randn(*s, dtype=torch.bfloat16) * 0.05)(D, F)),
            "b1": _w((lambda *s: torch.randn(*s, dtype=torch.bfloat16) * 0.2)(F)),
            "w2": _w((lambda *s: torch.randn(*s, dtype=torch.bfloat16) * 0.05)(F, D)),
            "b2": _w((lambda *s: torch.randn(*s, dtype=torch.bfloat16) * 0.8)(D)),
        }
    _B_in = _B_setup()

    return {
        "A_u": _A_in["u"],
        "A_log_A_real": _A_in["log_A_real"],
        "A_A_imag": _A_in["A_imag"],
        "A_C_real": _A_in["C_real"],
        "A_C_imag": _A_in["C_imag"],
        "A_log_dt": _A_in["log_dt"],
        "A_D_skip": _A_in["D_skip"],
        "B_x": _B_in["x"],
        "B_w1": _B_in["w1"],
        "B_b1": _B_in["b1"],
        "B_w2": _B_in["w2"],
        "B_b2": _B_in["b2"],
    }

def reference(A_u, A_log_A_real, A_A_imag, A_C_real, A_C_imag, A_log_dt, A_D_skip, B_x, B_w1, B_b1, B_w2, B_b2):
    def _A_ref(u, log_A_real, A_imag, C_real, C_imag, log_dt, D_skip):
        L = u.shape[1]
        dt = torch.exp(log_dt)
        A = -torch.exp(log_A_real) + 1j * A_imag
        C = (C_real + 1j * C_imag) * dt[:, None]
        pos = (lambda x, dt: x.to(dt))(torch.arange(L), log_dt.dtype)
        P = torch.exp((A * dt[:, None])[:, :, None] * pos[None, None, :])
        K = 2.0 * torch.einsum("dn,dnl->dl", C, P).real
        L2 = 2 * L
        u_t = (lambda x, *d: x.permute(*d))(u, 0, 2, 1)
        Kf = (lambda x, *a, **k: torch.fft.rfft(x.float(), *a, **k))(K, L2)
        Uf = (lambda x, *a, **k: torch.fft.rfft(x.float(), *a, **k))(u_t, L2)
        y = (lambda x, *a, **k: torch.fft.irfft(x, *a, **k).to(torch.bfloat16))(Uf * Kf[None, :, :], L2)[:, :, :L]
        y = (lambda x, *d: x.permute(*d))(y, 0, 2, 1)
        return y + u * D_skip[None, None, :]

    def _B_ref(x, w1, b1, w2, b2):
        h = torch.einsum("bsd,df->bsf", x, w1) + b1
        zero = torch.zeros_like(h)
        r = torch.where(h > zero, h, zero)
        h = r * r
        out = torch.einsum("bsf,fd->bsd", h, w2) + b2
        return out

    x = A_u
    xn = _layernorm(x, axis=-1)
    return x + _A_ref(xn, A_log_A_real, A_A_imag, A_C_real, A_C_imag, A_log_dt, A_D_skip) + _B_ref(xn, B_w1, B_b1, B_w2, B_b2)
```

```python
import re

TRANS = ("v_exp_f32", "v_log_f32", "v_rcp_f32", "v_rsq_f32", "v_sqrt_f32", "v_sin_f32", "v_cos_f32", "v_rcp_iflag_f32")

def regs_of(tok):
    tok = tok.strip()
    tok = re.sub(r"^(-|abs\(|\|)+", "", tok).rstrip(")|")
    m = re.fullmatch(r"([vsa])(\d+)", tok)
    if m: return {(m.group(1), int(m.group(2)))}
    m = re.fullmatch(r"([vsa])\[(\d+):(\d+)\]", tok)
    if m: return {(m.group(1), i) for i in range(int(m.group(2)), int(m.group(3)) + 1)}
    if tok == "vcc": return {("s", 106), ("s", 107)}
    if tok == "vcc_lo": return {("s", 106)}
    if tok == "vcc_hi": return {("s", 107)}
    if tok == "m0": return {("m", 0)}
    if tok == "exec": return {("e", 0)}
    return set()

def split_ops(s):
    out, depth, cur = [], 0, ""
    for ch in s:
        if ch in "[(": depth += 1
        if ch in "])": depth -= 1
        if ch == "," and depth == 0:
            out.append(cur.strip()); cur = ""
        else: cur += ch
    if cur.strip(): out.append(cur.strip())
    return out

class Ins:
    def __init__(self, text):
        self.text = text
        t = text.split(";")[0].strip()
        parts = t.split(None, 1)
        self.mn = parts[0]
        rest = parts[1] if len(parts) > 1 else ""
        ops = split_ops(rest)
        self.mods = ""
        if ops:
            last = ops[-1].split(None, 1)
            ops[-1] = last[0]
            self.mods = last[1] if len(last) > 1 else ""
        self.ops = ops
        mn = self.mn
        self.is_mfma = mn.startswith("v_mfma")
        self.is_valu = mn.startswith("v_") and not self.is_mfma
        self.is_dot = mn.startswith("v_dot")
        self.is_trans = any(mn.startswith(x) for x in TRANS)
        self.is_ds = mn.startswith("ds_")
        self.is_vmem = mn.startswith(("buffer_", "global_", "flat_"))
        self.is_salu = mn.startswith("s_")
        self.is_dpp = "_dpp" in mn or "quad_perm" in self.mods or "row_" in self.mods
        self.is_perm = mn.startswith("v_permlane")
        self.is_rl = mn.startswith(("v_readlane", "v_readfirstlane"))
        self.ldsdma = self.is_vmem and (re.search(r"\blds\b", self.mods) is not None or "_lds_" in mn)
        R = [regs_of(o) for o in ops]
        self.w, self.r = set(), set()
        self.srcc = set(); self.srcab = set(); self.stdata = set()
        if self.is_mfma:
            self.w = R[0]; self.srcab = R[1] | R[2]; self.srcc = R[3]; self.r = self.srcab | self.srcc
            self.passes = 8 if "32x32" in mn else 4
        elif self.is_valu:
            if "swap" in mn:
                self.w = R[0] | R[1]; self.r = R[0] | R[1]
            elif re.match(r"v_(add|sub|subrev|addc|subb|subbrev)_co", mn) or mn.startswith(("v_div_scale", "v_mad_u64")):
                self.w = R[0] | R[1]; self.r = set().union(*R[2:])
            else:
                self.w = R[0]; self.r = set().union(*R[1:]) if len(R) > 1 else set()
                if mn.startswith(("v_fmac", "v_dot2c", "v_pk_fmac", "v_writelane")) or self.is_dpp or "UNUSED_PRESERVE" in self.mods: self.r |= R[0]
                if mn.startswith("v_cndmask") and len(ops) == 3: self.r |= regs_of("vcc")
            if mn.startswith("v_cmpx"): self.w |= {("e", 0)}
        elif self.is_ds:
            if mn.startswith(("ds_read", "ds_bpermute", "ds_permute", "ds_swizzle")) or "_rtn" in mn:
                self.w = R[0]; self.r = set().union(*R[1:])
            else: self.r = set().union(*R)
        elif self.is_vmem:
            if "load" in mn and not self.ldsdma:
                self.w = R[0]; self.r = set().union(*R[1:])
            elif "atomic" in mn and "sc0" in self.mods and mn.startswith("global"):
                self.w = R[0]; self.r = set().union(*R[1:])
            else:
                self.r = set().union(*R)
                if "store" in mn and ("x3" in mn or "x4" in mn):
                    self.stdata = R[0] if mn.startswith("buffer") else R[1]
            if self.ldsdma: self.r |= {("m", 0)}
        elif self.is_salu:
            if mn.startswith(("s_cmp", "s_cbranch", "s_branch", "s_waitcnt", "s_nop", "s_barrier", "s_endpgm", "s_sleep", "s_setprio", "s_bitcmp")):
                self.r = set().union(*R) if R else set()
            else:
                self.w = R[0] if R else set(); self.r = set().union(*R[1:]) if len(R) > 1 else set()
                if "saveexec" in mn: self.w |= {("e", 0)}
        self.states = 1
        if mn == "s_nop": self.states = int(ops[0], 0) + 1

def need(p, c):
    n = 0
    vw = {x for x in p.w if x[0] in "va"}
    sw = {x for x in p.w if x[0] == "s"}
    if p.is_valu:
        if c.is_mfma and vw & c.r: n = max(n, 3 if p.is_dot else 2)
        if p.is_trans and c.is_valu and vw & (c.r): n = max(n, 1)
        if p.is_trans and (c.is_ds or c.is_vmem) and vw & c.r: n = max(n, 1)
        if c.is_valu and c.is_dpp and vw & c.r: n = max(n, 2)
        if c.is_perm and vw & c.r: n = max(n, 2)
        if c.is_rl and vw & c.r: n = max(n, 1)
        if sw and c.is_valu and sw & c.r: n = max(n, 4 if c.is_rl else 2)
        if sw and c.is_vmem and sw & c.r: n = max(n, 5)
        if sw and c.is_salu and sw & c.r: n = max(n, 1)
        if p.is_dot and (vw & (c.r | c.w)) and not (c.mn == p.mn and c.ops[-1] == p.ops[0] and not (vw & (regs_of(c.ops[1]) | regs_of(c.ops[2])))): n = max(n, 3)
        if ("e", 0) in p.w and (c.is_mfma or c.is_rl or c.is_perm): n = max(n, 4)
        if ("e", 0) in p.w and c.is_dpp: n = max(n, 5)
        if ("sdwa" in p.mn or "op_sel" in p.mods and not p.mn.startswith("v_pk")) and c.is_valu and vw & (c.r | c.w): n = max(n, 1)
    if p.is_mfma:
        big = p.passes == 8
        if c.is_mfma:
            if vw & c.srcab: n = max(n, 12 if big else 8)
            if vw & c.srcc and not (c.srcc == p.w and c.passes == p.passes): n = max(n, 10 if big else 6)
            if vw & c.w and not (c.w == p.w): n = max(n, 10 if big else 6)
        elif (c.is_valu or c.is_ds or c.is_vmem) and vw & (c.r | c.w): n = max(n, 12 if big else 8)
        if c.is_valu and p.srcc & c.w: n = max(n, 7 if big else 3)
    if p.is_salu and ("m", 0) in p.w and c.ldsdma: n = max(n, 1)
    if p.stdata and (c.w & p.stdata): n = max(n, 2 if c.is_valu else 1)
    return n

class Asm:
    def __init__(self):
        self.lines = []
        self.vm = []
        self.uid = 0
        self.lg = []
        self.tail = []
        self.stamps = False
    def __call__(self, *texts):
        for t in texts:
            for l in t.split("\n"):
                l = l.strip()
                if not l: continue
                if l.endswith(":") or l.startswith(".") or l.startswith(";"): self.lines.append(("raw", l))
                else: self.lines.append(("ins", l))
    def label(self, base="L"):
        self.uid += 1
        return f"{base}_{self.uid}"
    def vmem(self, text, tag=None):
        self(text); self.vm.append(tag)
    def vm_wait(self, tag):
        idx = max(i for i, t in enumerate(self.vm) if t == tag)
        n = len(self.vm) - 1 - idx
        self(f"s_waitcnt vmcnt({min(n, 63)})")
        self.vm = self.vm[idx + 1:]
    def ds(self, text, tag=None):
        self(text); self.lg.append(tag)
    def lg_wait(self, tag):
        idx = [i for i, t in enumerate(self.lg) if t == tag]
        if not idx: return
        n = len(self.lg) - 1 - max(idx)
        self(f"s_waitcnt lgkmcnt({min(n, 15)})")
        self.lg = self.lg[max(idx) + 1:]
    def stamp(self, i):
        if self.stamps: self(f"s_memrealtime s[{84+2*i}:{85+2*i}]")
    def stamp_init(self):
        if self.stamps:
            for i in range(9): self(f"s_mov_b32 s{84+2*i}, 0")
            self("s_memtime s[42:43]")
    def stamp_flush(self, off):
        if not self.stamps: return
        self("s_waitcnt vmcnt(0)", "s_memrealtime s[100:101]", "s_memtime s[8:9]", "s_waitcnt lgkmcnt(0)", "s_sub_u32 s8, s8, s42", "v_mov_b32 v21, s8")
        for i in range(9): self(f"v_mov_b32 v{12+i}, s{84+2*i}")
        self("v_mov_b32 v11, 0", "s_lshl_b32 s8, s2, 4", "s_add_u32 s8, s8, s3", "s_lshl_b32 s8, s8, 6", f"s_add_u32 s8, s8, {off}")
        self("s_mov_b64 exec, 1")
        for i in range(3): self(f"buffer_store_dwordx4 v[{12+4*i}:{15+4*i}], v11, s[56:59], s8 offen offset:{16*i}")
    def vm_reset(self, tags=()):
        self.vm = list(tags)
    def render(self):
        out, hist = [], []
        for kind, l in self.lines:
            if kind == "raw":
                out.append(l)
                continue
            c = Ins(l)
            dist, pad = 0, 0
            for p in reversed(hist):
                if dist >= 20: break
                pad = max(pad, need(p, c) - dist)
                dist += p.states
            while pad > 0:
                k = min(pad, 16)
                nop = Ins(f"s_nop {k - 1}")
                out.append("    " + nop.text); hist.append(nop); pad -= k
            out.append("    " + l); hist.append(c)
            if len(hist) > 40: hist = hist[-40:]
        return "\n".join(out) + "\n"

def vr(a, n=1): return f"v{a}" if n == 1 else f"v[{a}:{a + n - 1}]"
def sr(a, n=1): return f"s{a}" if n == 1 else f"s[{a}:{a + n - 1}]"

def descriptor(name, vgpr, sgpr=102):
    acc = (vgpr + 3) // 4 * 4
    return f""".p2align 6
.amdhsa_kernel {name}
  .amdhsa_next_free_vgpr {vgpr}
  .amdhsa_next_free_sgpr {sgpr}
  .amdhsa_accum_offset {acc}
  .amdhsa_group_segment_fixed_size 0
  .amdhsa_kernarg_size 120
  .amdhsa_user_sgpr_count 2
  .amdhsa_user_sgpr_kernarg_segment_ptr 1
  .amdhsa_system_sgpr_workgroup_id_x 1
  .amdhsa_ieee_mode 0
.end_amdhsa_kernel
"""
```

```python
import sys
from asmlib import *
from layout import *
import k1, k2
def build(path, stamps=False, fine=False):
    a = Asm(); a.stamps = stamps; a.fine = fine
    ks = [k1.gen_k1(a, stamps), k2.gen_k2(a, stamps)]
    hdr = open(f"cdna_kernels/{NAME}.s.ref").read().split("; Override launch")[0]
    out = hdr
    for n, v, l, t in ks: out += f"; @launch kernel={n} grid=(256,1,1) block=({t},1,1) lds={l}\n"
    out += '.amdgcn_target "amdgcn-amd-amdhsa--gfx950"\n.text\n' + a.render()
    out += '.section .rodata,"a"\n'
    for n, v, l, t in ks: out += descriptor(n, v)
    open(path, "w").write(out)
if __name__ == "__main__":
    build(f"cdna_kernels/{NAME}.s")
    build("stamped.s", True)
```

```python
from asmlib import *
from layout import *
import struct

def f32(x): return "0x%08x" % struct.unpack("<I", struct.pack("<f", x))[0]
L2E = 1.4426950408889634
L2E_HI = struct.unpack("<f", struct.pack("<f", L2E))[0]
L2E_LO = L2E - L2E_HI
LN2 = 0.6931471805599453

NS = 6
DIST = 3
STAGE = 12288
LDS_RING = 65536
LDS_A = LDS_RING + NS * STAGE
A_STRIDE = 4096
LDS_STAT = LDS_A + 4 * A_STRIDE
LDS_FLAG = LDS_STAT + 512
K1_LDS = LDS_FLAG + 64
ST = "sc1"
APRIO = 0
GPRIO = 1
LPRIO = 2
W2PF = True

def srd(a, d, base, nbytes):
    a(f"s_mov_b32 s{d}, s{base}", f"s_mov_b32 s{d+1}, s{base+1}", f"s_mov_b32 s{d+2}, {hex(nbytes)}", f"s_mov_b32 s{d+3}, 0x00020000")

def exp_bf16(a, dst, src, t0, t1):
    a(f"v_mul_f32 v{t0}, s60, v{src}")
    a(f"v_fma_f32 v{t1}, v{src}, s60, -v{t0}")
    a(f"v_fmac_f32 v{t1}, s61, v{src}")
    a(f"v_exp_f32 v{t0}, v{t0}")
    a(f"v_mul_f32 v{t1}, s62, v{t1}")
    a(f"v_fmac_f32 v{t0}, v{t0}, v{t1}")
    a(f"v_cvt_pk_bf16_f32 v{t0}, v{t0}, v{t0}")
    a(f"v_and_b32 v{dst}, 0xffff0000, v{t0}")

def min4(a, t, s):
    a(f"v_min3_u32 v{t}, v{t}, v{t+1}, v{t+2}", f"v_min_u32 v{t}, v{t}, v{t+3}", f"v_readfirstlane_b32 s{s}, v{t}")

def spin4(a, vaddr, off, t, s, target=1, sleep=0):
    lab = a.label("SPIN")
    a(f"{lab}:")
    if sleep: a(f"s_sleep {sleep}")
    a(f"ds_read_b128 {vr(t,4)}, v{vaddr} offset:{off}", "s_waitcnt lgkmcnt(0)")
    min4(a, t, s)
    a(f"s_cmp_lt_u32 s{s}, {target}", f"s_cbranch_scc1 {lab}")

def spin1(a, vaddr, off, t, s, sleep=0):
    lab = a.label("SPIN")
    a(f"{lab}:")
    if sleep: a(f"s_sleep {sleep}")
    a(f"ds_read_b32 v{t}, v{vaddr} offset:{off}", "s_waitcnt lgkmcnt(0)", f"v_readfirstlane_b32 s{s}, v{t}", f"s_cmp_eq_u32 s{s}, 0", f"s_cbranch_scc1 {lab}")

def gen_k1(a, stamps=False):
    N = "k1_kernel"
    a(f".globl {N}", ".p2align 8", f".type {N},@function", f"{N}:")
    a("s_cmp_ge_u32 s2, 256", "s_cbranch_scc1 K1_END")
    a("s_load_dwordx16 s[16:31], s[0:1], 0", "s_load_dwordx8 s[32:39], s[0:1], 64", "s_load_dwordx2 s[40:41], s[0:1], 112")
    a.stamp_init(); a.stamp(0)
    a("v_lshrrev_b32 v1, 6, v0", "v_and_b32 v0, 63, v0", "v_readfirstlane_b32 s3, v1")
    a("v_and_b32 v9, 15, v0", "v_lshrrev_b32 v10, 4, v0", "v_lshlrev_b32 v11, 4, v0")
    a("v_mov_b32 v2, 0", "v_lshlrev_b32 v3, 2, v9", f"v_add_u32 v3, {LDS_FLAG}, v3", "ds_write_b32 v3, v2")
    a("s_and_b32 s8, s2, 7", "s_lshr_b32 s7, s2, 3")
    a("s_lshr_b32 s4, s8, 1", "s_lshl_b32 s4, s4, 3", "s_lshr_b32 s10, s7, 2", "s_add_u32 s4, s4, s10")
    a("s_and_b32 s5, s8, 1", "s_lshl_b32 s5, s5, 2", "s_and_b32 s10, s7, 3", "s_add_u32 s5, s5, s10")
    a("s_mul_i32 s6, s5, 5", "s_cmp_ge_u32 s5, 4", "s_addc_u32 s6, s6, 0", "s_cmp_ge_u32 s5, 7", "s_addc_u32 s6, s6, 0")
    a("s_and_b32 s12, s3, 3")
    a(f"v_mov_b32 v8, {LDS_FLAG}", "s_lshl_b32 s10, s12, 2", "v_add_u32 v7, s10, v8", "v_mov_b32 v6, 1")
    a("s_cmp_ge_u32 s3, 8", "s_cbranch_scc1 K1_L")
    a("s_cmp_ge_u32 s3, 4", "s_cbranch_scc1 K1_A")

    a.vm_reset()
    XA = 2
    ONES = 108
    GV = 112
    a("s_lshl_b32 s13, s6, 6", "s_mul_i32 s14, s12, 96", "s_add_u32 s13, s13, s14")
    a("v_lshlrev_b32 v12, 3, v10", "v_add_u32 v12, s13, v12")
    a("s_waitcnt lgkmcnt(0)")
    a.stamp(1)
    for ft in range(3):
        a.vmem(f"global_load_dwordx2 {vr(GV+6+2*ft, 2)}, v12, s[34:35] offset:{32*ft}", "b1")
    a("s_barrier")
    srd(a, 56, 40, WS_BYTES)
    for q in range(4):
        a(f"v_add_u32 v12, {4*q}, v10", "v_xor_b32 v12, v12, v9", "v_lshlrev_b32 v12, 4, v12", f"v_lshl_add_u32 v{XA+q}, v9, 8, v12")
    a("v_lshrrev_b32 v12, 2, v9", "v_lshl_add_u32 v12, v10, 2, v12", "v_bfe_u32 v13, v12, 1, 2", "v_mul_u32_u24 v12, 384, v12")
    a("v_and_b32 v14, 3, v9", "v_lshl_add_u32 v12, v14, 3, v12", f"v_add_u32 v12, {LDS_RING}, v12", "s_mul_i32 s8, s12, 3")
    for ft in range(3):
        a(f"s_add_u32 s9, s8, {ft}", "v_xor_b32 v14, s9, v13", f"v_lshl_add_u32 v{GV+ft}, v14, 5, v12")
    for ft in range(3): a(f"v_add_u32 v{GV+3+ft}, {3*STAGE}, v{GV+ft}")
    for i in range(4): a(f"v_mov_b32 v{ONES+i}, 0x3f803f80")
    a("s_lshl_b32 s10, s12, 12")
    for q in range(4): a(f"v_add_u32 v{124+q}, s10, v{XA+q}")
    a("s_mov_b32 s68, 0xaaaaaaaa", "s_mov_b32 s69, 0xaaaaaaaa", "s_mov_b32 s70, 0xcccccccc", "s_mov_b32 s71, 0xcccccccc")
    a(f"s_lshl_b32 s9, s12, 7", f"s_add_u32 s9, s9, {LDS_STAT}", "v_lshl_add_u32 v15, v9, 3, s9")
    ACC = 16
    XF = 64
    CS = 96
    WF = 128
    PT = 152
    SXF = 156
    S1 = 164; S2 = 12
    PV = 1
    a(f"v_mov_b32 v{PV}, 1", "v_mov_b32 v0, v15")
    def reads(n):
        st = n & 1; sl = n % NS
        def w(ft): return [(f"ds_read_b64_tr_b16 {vr(WF + 12*st + 4*ft + 2*hf, 2)}, v{GV + ft + (3 if sl >= 3 else 0)} offset:{(sl % 3) * STAGE + hf * 6144}", ("w", n, ft)) for hf in range(2)]
        x = [(f"ds_read_b128 {vr(XF + 16*st + 4*lt, 4)}, v{XA + (n & 3)} offset:{lt * 4096 + (n >> 2) * 16384}", ("x", n, lt)) for lt in range(4)]
        return w(0) + x + w(1) + w(2)
    fin = [f"v_cndmask_b32 v{S2}, v{S2}, v{S2+1}, s[68:69]", f"v_cndmask_b32 v{S2+2}, v{S2+2}, v{S2+3}, s[68:69]", f"v_mul_f32 v{S1}, {f32(1/512)}, v{S1}",
           f"v_cndmask_b32 v{S2}, v{S2}, v{S2+2}, s[70:71]", f"v_mul_f32 v{S2}, {f32(1/512)}, v{S2}",
           f"v_fma_f32 v{S2}, -v{S1}, v{S1}, v{S2}", f"v_max_f32 v{S2}, 0, v{S2}", f"v_cvt_pk_bf16_f32 v{S1+1}, v{S1}, v{S2}",
           f"v_lshlrev_b32 v{S1}, 16, v{S1+1}", f"v_and_b32 v{S2}, 0xffff0000, v{S1+1}",
           f"v_add_f32 v{S2}, {f32(1e-5)}, v{S2}", f"v_cvt_pk_bf16_f32 v{S2}, v{S2}, v{S2}", f"v_lshlrev_b32 v{S2}, 16, v{S2}",
           f"v_sqrt_f32 v{S2}, v{S2}", f"v_cvt_pk_bf16_f32 v{S2}, v{S2}, v{S2}", f"v_lshlrev_b32 v{S2}, 16, v{S2}",
           f"v_rcp_f32 v{S2}, v{S2}", f"v_mul_f32 v{S2+1}, -v{S1}, v{S2}", "STATW"]
    a.stamp(2)
    spin4(a, 8, 0, PT, 8, target=1, sleep=1)
    if GPRIO: a(f"s_setprio {GPRIO}")
    a.stamp(4)
    for t, tag in reads(0): a(t)
    spin4(a, 8, 0, PT, 8, target=2)
    a.lg = []
    slow = []
    for n in range(16):
        st = n & 1
        M = []
        for ft in range(3):
            w = vr(WF + 12*st + 4*ft, 4)
            for lt in range(4):
                d = vr(ACC + 16*ft + 4*lt, 4)
                M.append((f"v_mfma_f32_16x16x32_bf16 {d}, {w}, {vr(XF + 16*st + 4*lt, 4)}, {d if n else 0}", [("w", n, ft), ("x", n, lt)]))
            d = vr(CS + 4*ft, 4)
            M.append((f"v_mfma_f32_16x16x32_bf16 {d}, {w}, {vr(ONES, 4)}, {d if n else 0}", []))
        fill = [("ds",) + r for r in reads(n + 1)] if n + 1 < 16 else []
        if 2 <= n <= 9:
            SM = []
            for j in range(2):
                k = 2 * (n - 2) + j; f = vr(SXF + 4*j, 4)
                SM.append((f"v_mfma_f32_16x16x32_bf16 {vr(S1,4)}, {vr(ONES,4)}, {f}, {vr(S1,4) if k else 0}", [("s", k)]))
                SM.append((f"v_mfma_f32_16x16x32_bf16 {vr(S2,4)}, {f}, {f}, {vr(S2,4) if k else 0}", []))
            M = M[:5] + SM + M[5:]
        if 1 <= n <= 8:
            for j in range(2):
                k = 2 * (n - 1) + j
                fill.append(("ds", f"ds_read_b128 {vr(SXF + 4*j, 4)}, v{124 + (k & 3)} offset:{(k >> 2) * 16384}", ("s", k)))
        if n + NS < 16: fill.insert(3, ("free",))
        chk = n + 2 < 16
        nm = len(M)
        for i, (m, need_) in enumerate(M):
            pos = [max(j for j, t in enumerate(a.lg) if t == tg) for tg in need_ if tg in a.lg]
            if pos: a.lg_wait(a.lg[max(pos)])
            a(m)
            if chk and i == nm - 8: a.ds(f"ds_read_b128 {vr(PT,4)}, v8", ("f", n))
            if fill:
                f = fill.pop(0)
                if f[0] == "ds": a.ds(f[1], f[2])
                else:
                    a.lg_wait(("w", n, 2))
                    a.ds(f"ds_write_b32 v7, v{PV} offset:48")
            if 10 <= n <= 12 and fin and i >= 1 and (i & 1):
                f = fin.pop(0)
                if f == "STATW":
                    a("s_mov_b32 exec_lo, 0x00f0000f", "s_mov_b32 exec_hi, 0xf0000f00")
                    a.ds(f"ds_write_b64 v0, {vr(S2,2)}")
                    a("s_mov_b64 exec, -1")
                    a.ds("ds_write_b32 v7, v6 offset:16")
                else: a(f)
            if chk:
                if i == nm - 4: a.lg_wait(("f", n)); a(f"v_min3_u32 v{PT}, v{PT}, v{PT+1}, v{PT+2}")
                elif i == nm - 3: a(f"v_min_u32 v{PT}, v{PT}, v{PT+3}", f"v_mov_b32 v{PV}, {n + 2}")
                elif i == nm - 2: a(f"v_readfirstlane_b32 s8, v{PT}")
                elif i == nm - 1:
                    lab = a.label("GSLOW"); back = a.label("GBACK")
                    a(f"s_cmp_lt_u32 s8, {n + 3}", f"s_cbranch_scc1 {lab}", f"{back}:")
                    slow.append((lab, back, n + 3))
        assert not fill, (n, fill)
        if n == 7: a.stamp(5)
    assert not fin
    a.stamp(6)
    spin4(a, 8, 16, 12, 8)
    SR = 152
    a(f"v_lshlrev_b32 v12, 3, v9", f"v_add_u32 v12, {LDS_STAT}, v12")
    for lt in range(4): a(f"ds_read_b64 {vr(SR + 2*lt, 2)}, v12 offset:{128*lt}")
    B1 = 128
    a.vm_wait("b1")
    for ft in range(3):
        for h in range(2):
            a(f"v_lshlrev_b32 v{B1+4*ft+2*h}, 16, v{GV+6+2*ft+h}", f"v_and_b32 v{B1+4*ft+2*h+1}, 0xffff0000, v{GV+6+2*ft+h}")
    a("s_mul_i32 s8, s4, 172", "s_lshl_b32 s9, s6, 1", "s_add_u32 s8, s8, s9", "s_mul_i32 s9, s12, 3", "s_add_u32 s8, s8, s9", "s_lshl_b32 s8, s8, 10")
    a(f"s_add_u32 s8, s8, {HF}", f"s_add_u32 s9, s8, {86*1024}")
    a("s_waitcnt lgkmcnt(0)")
    O = 64; TT = 80
    for ft in range(3):
        for pa in range(2):
            o = O + 4 * ((2*ft + pa) % 4)
            prs = [(ACC + 16*ft + 4*(2*pa + t) + 2*h, 4*ft + 2*h, o + 2*t + h, SR + 2*(2*pa + t), TT + 2*(2*t + h)) for t in range(2) for h in range(2)]
            for (c, b, d, s, t) in prs: a(f"v_pk_fma_f32 {vr(t,2)}, {vr(CS+b,2)}, {vr(s,2)}, {vr(B1+b,2)} op_sel:[0,1,0] op_sel_hi:[1,1,1]")
            for (c, b, d, s, t) in prs: a(f"v_pk_fma_f32 {vr(c,2)}, {vr(c,2)}, {vr(s,2)}, {vr(t,2)} op_sel:[0,0,0] op_sel_hi:[1,0,1]")
            for (c, b, d, s, t) in prs: a(f"v_mul_f32 v{c}, v{c}, |v{c}|", f"v_mul_f32 v{c+1}, v{c+1}, |v{c+1}|")
            for (c, b, d, s, t) in prs: a(f"v_cvt_pk_bf16_f32 v{d}, v{c}, v{c+1}")
            for (c, b, d, s, t) in prs: a(f"v_pk_max_i16 v{d}, v{d}, 0")
            a(f"v_permlane16_swap_b32 v{o}, v{o+2}", f"v_permlane16_swap_b32 v{o+1}, v{o+3}")
            a(f"buffer_store_dwordx4 {vr(o,4)}, v11, s[56:59], s{8+pa} offen offset:{ft*1024} {ST}")
    a.stamp(7)
    a("s_branch K1_FIN")
    for lab, back, tgt in slow:
        a(f"{lab}:")
        spin4(a, 8, 0, PT, 8, target=tgt)
        a(f"s_branch {back}")

    a("K1_L:")
    a.vm_reset()
    LV = 20
    a("s_lshl_b32 s13, s6, 6")
    a("s_mul_i32 s14, s12, 192")
    for i in range(3):
        a(f"s_add_u32 s8, s14, {64*i}", "v_add_u32 v16, s8, v0", "v_mul_u32_u24 v12, 2731, v16", "v_lshrrev_b32 v12, 16, v12")
        a("v_mul_u32_u24 v13, 24, v12", "v_sub_u32 v13, v16, v13")
        a("v_bfe_u32 v14, v12, 1, 2", "v_lshlrev_b32 v14, 1, v14", "v_xor_b32 v13, v13, v14")
        a("v_bfe_u32 v14, v12, 2, 2", "v_lshlrev_b32 v14, 3, v14", "v_lshrrev_b32 v15, 4, v12", "v_lshl_add_u32 v14, v15, 2, v14")
        a("v_and_b32 v15, 3, v12", "v_add_u32 v14, v14, v15")
        a("v_mul_u32_u24 v14, 2752, v14", f"v_lshl_add_u32 v14, v13, 4, v14", f"v_add_u32 v{LV+i}, s13, v14")
    a("s_mul_i32 s64, s12, 3072", f"s_add_u32 s64, s64, {LDS_RING}")
    a("s_lshl_b32 s11, s4, 16", "s_lshl_b32 s10, s12, 14", "s_add_u32 s11, s11, s10", "s_lshl_b32 s10, s12, 12")
    for j in range(4):
        a(f"v_add_u32 v12, {4*j}, v10", "v_xor_b32 v13, v12, v9", "v_lshlrev_b32 v13, 4, v13", f"v_lshl_add_u32 v{16+j}, v12, 10, v13")
    a("s_waitcnt lgkmcnt(0)")
    a.stamp(1)
    srd(a, 44, 16, 2048 * 512 * 2)
    srd(a, 48, 32, 512 * 1376 * 2)
    srd(a, 56, 40, WS_BYTES)
    a("s_barrier")
    if LPRIO: a(f"s_setprio {LPRIO}")
    def xq(q):
        for j in range(4):
            a(f"s_add_u32 m0, s10, {16384*q + 1024*j}")
            a.vmem(f"buffer_load_dwordx4 v{16+j}, s[44:47], s11 offen lds", ("x", q))
        a("s_add_u32 s11, s11, 256")
    def dma(n):
        a(f"s_mov_b32 s66, {n * 88064}")
        for i in range(3):
            a(f"s_add_u32 m0, s64, {(n % NS) * STAGE + i * 1024}")
            a.vmem(f"buffer_load_dwordx4 v{LV+i}, s[48:51], s66 offen lds", ("d", n))
    def pub(n):
        a(f"v_mov_b32 v12, {n + 1}")
        a.vm_wait(("d", n))
        a("ds_write_b32 v7, v12")
    extra = []
    lslow = []
    for m in range(16 + DIST):
        if m < 16:
            if m in (0, 2, 4, 6): xq(m >> 1)
            if m >= NS:
                a("s_waitcnt lgkmcnt(1)")
                min4(a, 28, 8)
                lab = a.label("LSLOW"); back = a.label("LBACK")
                a(f"s_cmp_lt_u32 s8, {m - NS + 1}", f"s_cbranch_scc1 {lab}", f"{back}:")
                lslow.append((lab, back, m - NS + 1))
            dma(m)
        else:
            for _ in range(3):
                if extra: a.vmem(extra.pop(0))
        if m == 1:
            for i in range(4): a(f"v_mov_b32 v{24+i}, -1")
            a("s_lshl_b32 s72, s2, 2", "s_add_u32 s72, s72, s12", "s_lshl_b32 s9, s72, 11", f"s_add_u32 s9, s9, {AO}")
            extra.append(f"buffer_store_dwordx4 v[24:27], v11, s[56:59], s9 offen {ST}")
            extra.append(f"buffer_store_dwordx4 v[24:27], v11, s[56:59], s9 offen offset:1024 {ST}")
            if W2PF:
                srd(a, 52, 36, 1376 * 512 * 2)
                a("s_lshl_b32 s73, s7, 2", "s_add_u32 s73, s73, s12", "s_mul_i32 s73, s73, 11264", "s_add_u32 s74, s73, 4096", "s_add_u32 s75, s73, 8192")
                for i in range(11): extra.append(f"buffer_load_dwordx4 {vr(32 + 4*i, 4)}, v11, s[52:55], s{73 + i // 4} offen offset:{(i & 3) * 1024}")
        if m >= DIST:
            a(f"v_mov_b32 v12, {m - DIST + 1}")
            a.vm_wait(("d", m - DIST))
            if NS <= m + 1 < 16: a("ds_read_b128 v[28:31], v8 offset:48")
            a("ds_write_b32 v7, v12")
        if m == DIST: a.stamp(3)
        if m == 7 + DIST: a.stamp(4)
    a.stamp(6)
    while extra: a.vmem(extra.pop(0))
    a.stamp(7)
    a("s_branch K1_FIN")
    for lab, back, tgt in lslow:
        a(f"{lab}:")
        spin4(a, 8, 48, 28, 8, target=tgt, sleep=1)
        a(f"s_branch {back}")

    a("K1_A:")
    a.vm_reset()
    a("s_lshr_b32 s13, s12, 1", "s_and_b32 s14, s12, 1", "s_lshl_b32 s15, s2, 1", "s_add_u32 s15, s15, s13")
    a("s_lshl_b32 s10, s15, 8", "s_lshl_b32 s8, s14, 7", "s_add_u32 s8, s8, s10")
    a("v_lshl_add_u32 v12, v0, 1, s8", "v_lshl_add_u32 v13, v0, 2, s10")
    a("s_lshl_b32 s10, s2, 2")
    a("s_waitcnt lgkmcnt(0)")
    a.stamp(1)
    P = 152
    for i, p in enumerate((18, 20, 22, 24)):
        a.vmem(f"global_load_ushort v{P+i}, v12, s[{p}:{p+1}]", "p")
    a.vmem(f"global_load_dword v{P+4}, v13, s[22:23]", "p")
    a.vmem(f"global_load_dword v{P+5}, v13, s[24:25]", "p")
    a("s_load_dword s63, s[26:27], s10")
    a("s_barrier")
    srd(a, 56, 40, WS_BYTES)
    a(f"s_mul_i32 s64, s12, {A_STRIDE}", f"s_add_u32 s64, s64, {LDS_A}")
    a("s_xor_b32 s77, s12, 1", f"s_mul_i32 s77, s77, {A_STRIDE}", f"s_add_u32 s77, s77, {LDS_A}")
    if APRIO: a(f"s_setprio {APRIO}")
    E = 112
    a("s_lshl_b32 s8, s14, 9", "v_lshl_add_u32 v12, v0, 3, s8", "v_cvt_f32_u32 v12, v12")
    for k in range(0, 16, 2):
        c0, e0 = k >> 3, k & 7
        a(f"v_add_f32 v13, {f32(1024*c0 + e0)}, v12", f"v_add_f32 v14, {f32(1024*c0 + e0 + 1)}, v12")
        a("v_cvt_pk_bf16_f32 v13, v13, v14")
        a("v_and_b32 v14, 0xffff0000, v13", "v_lshlrev_b32 v13, 16, v13", "v_cvt_u32_f32 v13, v13", "v_cvt_u32_f32 v14, v14")
        for r, kk in ((13, k), (14, k + 1)):
            a(f"v_lshrrev_b32 v15, 2, v{r}", "v_add_u32 v15, 384, v15")
            if c0 == 0: a(f"v_min_u32 v15, v{r}, v15")
            a(f"v_lshl_add_u32 v{E+kk}, v15, 1, s77")
    RA = 132
    KA = 136
    a(f"v_lshlrev_b32 v12, 4, v10", f"v_add_u32 v{RA}, s64, v12", f"v_cvt_f32_u32 v{RA+1}, v9")
    for i in range(16): a(f"v_mov_b32 v{KA+i}, 0")
    a(f"s_mov_b32 s60, {f32(L2E_HI)}", f"s_mov_b32 s61, {f32(L2E_LO)}", f"s_mov_b32 s62, {f32(LN2)}")
    a.stamp(2)
    a.vm_wait("p")
    a("s_waitcnt lgkmcnt(0)")
    a.stamp(3)
    a("s_lshl_b32 s10, s13, 4", "s_lshr_b32 s63, s63, s10", "s_lshl_b32 s63, s63, 16")
    T = 16
    a(f"v_and_b32 v{P+4}, 0x7fff7fff, v{P+4}", f"v_and_b32 v{P+5}, 0x7fff7fff, v{P+5}", f"v_pk_max_u16 v{P+4}, v{P+4}, v{P+5}")
    a(f"v_mov_b32 v{T}, s63")
    a(f"v_lshrrev_b32 v{P+5}, 16, v{P+4}", f"v_and_b32 v{P+4}, 0xffff, v{P+4}", f"v_max_u32 v{P+4}, v{P+4}, v{P+5}")
    for i in range(4): a(f"v_lshlrev_b32 v{P+i}, 16, v{P+i}")
    b1_, b2_ = Asm(), Asm()
    exp_bf16(b1_, T, T, T + 1, T + 2); exp_bf16(b2_, P, P, T + 3, T + 4)
    dpp = [f"v_max_u32_dpp v{P+4}, v{P+4}, v{P+4} {m} row_mask:0xf bank_mask:0xf" for m in ("quad_perm:[1,0,3,2]", "quad_perm:[2,3,0,1]", "row_half_mirror", "row_mirror")]
    for i in range(8):
        a(b1_.lines[i][1], b2_.lines[i][1])
        if i < 4: a(dpp[i])
    for i, ln in enumerate((0, 16, 32, 48)): a(f"v_readlane_b32 s{80+i}, v{P+4}, {ln}")
    RZ = 24
    a(f"v_mul_f32 v{T+1}, v{P}, v{T}", f"v_mul_f32 v{T+2}, v{P+1}, v{T}")
    a("s_max_u32 s80, s80, s81", "s_max_u32 s82, s82, s83", "s_max_u32 s80, s80, s82", "s_lshr_b32 s80, s80, 7")
    a("s_max_u32 s80, s80, 1", "s_min_u32 s80, s80, 250")
    a("s_sub_u32 s81, 253, s80", "s_lshl_b32 s81, s81, 23")
    a("s_add_u32 s82, s80, 2", "s_lshl_b32 s82, s82, 23")
    a(f"v_mul_f32 v{RZ}, {f32(-L2E)}, v{T+1}")
    a(f"v_mul_f32 v{RZ+1}, 0.15915494, v{T+2}")
    a(f"v_rndne_f32 v{T+1}, v{RZ+1}", f"v_sub_f32 v{RZ+1}, v{RZ+1}, v{T+1}")
    a("v_lshl_add_u32 v12, v0, 2, s64")
    a(f"ds_write_b32 v12, v{RZ}", f"ds_write_b32 v12, v{RZ+1} offset:256")
    a(f"v_mul_f32 v{RZ+2}, s81, v{P+2}", f"v_mul_f32 v{RZ+3}, s81, v{P+3}")
    a(f"v_mul_f32 v{P+5}, s82, v{T}")
    a(f"v_cvt_pk_f16_f32 v{RZ+4}, v{RZ+2}, v{RZ+3}")
    U3 = 32
    K3 = ((1, 256.0), (2, 512.0), (3, 1536.0))
    for k, c in K3: t = U3 + 4*(k-1); a(f"v_mul_f32 v{t}, {f32(c)}, v{RZ}", f"v_mul_f32 v{t+1}, {f32(c)}, v{RZ+1}")
    for k, c in K3: t = U3 + 4*(k-1); a(f"v_exp_f32 v{t}, v{t}", f"v_fract_f32 v{t+1}, v{t+1}")
    for k, c in K3: t = U3 + 4*(k-1); a(f"v_cos_f32 v{t+2}, v{t+1}", f"v_sin_f32 v{t+3}, v{t+1}")
    for k, c in K3: t = U3 + 4*(k-1); a(f"v_mul_f32 v{t+2}, v{t}, v{t+2}", f"v_mul_f32 v{t+3}, v{t}, v{t+3}")
    for k, c in K3: t = U3 + 4*(k-1); a(f"v_mul_f32 v{t}, v{RZ+3}, v{t+3}", f"v_mul_f32 v{t+1}, v{RZ+3}, v{t+2}")
    for k, c in K3: t = U3 + 4*(k-1); a(f"v_fma_f32 v{t}, v{RZ+2}, v{t+2}, -v{t}", f"v_fmac_f32 v{t+1}, v{RZ+2}, v{t+3}")
    for k, c in K3: t = U3 + 4*(k-1); a(f"v_cvt_pk_f16_f32 v{RZ+4+k}, v{t}, v{t+1}")
    for i, r in enumerate((RZ + 4, RZ + 5, RZ + 6, RZ + 7)): a(f"ds_write_b32 v12, v{r} offset:{512 + 256*i}")
    a.stamp(4)
    OPB = 16
    YH = 24
    OPA = 28
    RC = 44
    Y = 68
    J4 = range(4)
    yr = lambda j: Y + 3*j
    yi = lambda j: Y + 3*j + 1
    tt = lambda j: Y + 3*j + 2
    def sq():
        for j in J4: a(f"v_mul_f32 v{tt(j)}, v{yi(j)}, v{yi(j)}")
        for j in J4: a(f"v_mul_f32 v{yi(j)}, v{yr(j)}, v{yi(j)} mul:2")
        for j in J4: a(f"v_fma_f32 v{yr(j)}, v{yr(j)}, v{yr(j)}, -v{tt(j)}")
    def cvt(dst):
        for j in J4: a(f"v_cvt_pk_f16_f32 v{dst+j}, v{yr(j)}, v{yi(j)}")
    def xmul(k):
        for j in J4: a(f"v_pk_mul_f16 v{OPA+4*k+j}, v{RC+8+4*k+j}, v{YH+j} op_sel:[1,1] op_sel_hi:[1,0]")
        for j in J4: a(f"v_pk_fma_f16 v{OPA+4*k+j}, v{RC+8+4*k+j}, v{YH+j}, v{OPA+4*k+j} op_sel:[0,0,0] op_sel_hi:[0,1,1] neg_lo:[0,0,1] neg_hi:[1,0,1]")
    for i in range(2): a(f"ds_read_b128 {vr(RC+4*i,4)}, v{RA} offset:{256*i}")
    a("s_mov_b32 s8, 4")
    a("K1_KLOOP:")
    a("s_waitcnt lgkmcnt(0)")
    for j in J4: a(f"v_mul_f32 v{tt(j)}, v{RC+j}, v{RA+1}", f"v_mul_f32 v{yi(j)}, v{RC+4+j}, v{RA+1}")
    for i in range(2, 6): a(f"ds_read_b128 {vr(RC+4*i,4)}, v{RA} offset:{256*i}")
    for i in range(2): a(f"ds_read_b128 {vr(RC+4*i,4)}, v{RA} offset:{256*i + 64}")
    a(f"v_add_u32 v{RA}, 64, v{RA}")
    for j in J4: a(f"v_exp_f32 v{tt(j)}, v{tt(j)}", f"v_cos_f32 v{yr(j)}, v{yi(j)}", f"v_sin_f32 v{yi(j)}, v{yi(j)}")
    for j in J4: a(f"v_mul_f32 v{yr(j)}, v{yr(j)}, v{tt(j)}", f"v_mul_f32 v{yi(j)}, v{yi(j)}, v{tt(j)}")
    cvt(OPB); sq(); sq(); cvt(OPB + 4); sq(); sq(); cvt(YH)
    a("s_waitcnt lgkmcnt(0)")
    xmul(0); xmul(1); sq()
    for k in range(2): a(f"v_mfma_f32_16x16x32_f16 {vr(KA+4*k,4)}, {vr(OPB,4)}, {vr(OPA+4*k,4)}, {vr(KA+4*k,4)}")
    sq(); cvt(YH); xmul(2); xmul(3)
    a("s_sub_u32 s8, s8, 1", "s_cmp_lg_u32 s8, 0")
    for k in (2, 3): a(f"v_mfma_f32_16x16x32_f16 {vr(KA+4*k,4)}, {vr(OPB+4,4)}, {vr(OPA+4*k,4)}, {vr(KA+4*k,4)}")
    a("s_cbranch_scc1 K1_KLOOP")
    a.stamp(5)
    a("v_add_u32 v12, s64, v11")
    for k in range(4): a(f"ds_write_b128 v12, {vr(KA+4*k,4)} offset:{1024*k}")
    a("ds_write_b32 v7, v6 offset:32")
    a("v_xor_b32 v14, 4, v7", "v_add_u32 v12, s77, v11")
    spin1(a, 14, 32, 13, 10)
    PB = 64
    for k in range(4): a(f"ds_read_b128 {vr(PB+4*k,4)}, v12 offset:{1024*k}")
    a("v_lshlrev_b32 v13, 3, v10", "v_lshl_add_u32 v14, v9, 5, v13", "v_add_u32 v14, s77, v14")
    for k in range(4):
        a("s_waitcnt lgkmcnt(3)")
        for e in range(4): a(f"v_add_f32 v{KA+4*k+e}, v{KA+4*k+e}, v{PB+4*k+e}")
        a(f"v_cvt_pk_f16_f32 v{PB+4*k}, v{KA+4*k}, v{KA+4*k+1}", f"v_cvt_pk_f16_f32 v{PB+4*k+1}, v{KA+4*k+2}, v{KA+4*k+3}")
        a(f"ds_write_b64 v14, {vr(PB+4*k,2)} offset:{512*k}")
    a(f"s_mul_i32 s8, s15, {KROW}", f"s_add_u32 s8, s8, {KC}", "s_lshl_b32 s9, s14, 10", "s_add_u32 s9, s9, s8")
    KO = 80
    def kstore(ci):
        e = E + 8*ci; o = KO + 4*ci
        for j in range(4): a(f"v_lshl_or_b32 v{o+j}, v{e+2*j+1}, 16, v{e+2*j}")
        a(f"buffer_store_dwordx4 {vr(o,4)}, v11, s[56:59], s9 offen offset:{128 + 2048*ci} {ST}")
    for k in range(16): a(f"ds_read_u16 v{E+k}, v{E+k}")
    a("v_cmp_eq_u32 vcc, 0, v0", "v_mov_b32 v13, 0", "v_mov_b32 v14, 0", "v_mov_b32 v15, 0", f"v_cndmask_b32 v12, 0, v{P+5}, vcc")
    a("s_cmp_eq_u32 s14, 0", "s_cbranch_scc0 K1_NOHDR")
    a("s_mov_b64 exec, 0xff")
    a(f"buffer_store_dwordx4 v[12:15], v11, s[56:59], s8 offen {ST}")
    a("s_mov_b64 exec, -1")
    a("K1_NOHDR:")
    a("s_waitcnt lgkmcnt(8)")
    kstore(0)
    a("s_waitcnt lgkmcnt(0)")
    kstore(1)
    a.stamp(6)
    a("s_setprio 0")
    spin4(a, 8, 16, 16, 9, sleep=2)
    UR = 24; SS = 32; UT = 64
    a("v_lshrrev_b32 v12, 2, v9", "v_lshl_add_u32 v12, v10, 3, v12")
    a("s_and_b32 s8, s5, 1", "s_lshl_b32 s8, s8, 3", "s_lshl_b32 s9, s12, 1", "s_add_u32 s8, s8, s9", "v_bfe_u32 v13, v9, 1, 1", "v_add_u32 v13, s8, v13")
    a("s_lshr_b32 s9, s5, 1", "s_lshl_b32 s9, s9, 14")
    a("v_and_b32 v14, 1, v9", "v_lshl_add_u32 v14, v14, 3, s9")
    for hf in range(2):
        if hf: a("v_add_u32 v12, 4, v12")
        a("v_and_b32 v15, 15, v12", "v_xor_b32 v15, v15, v13", "v_lshl_add_u32 v15, v15, 4, v14", "v_lshl_add_u32 v15, v12, 8, v15")
        for rr in range(2): a(f"ds_read_b64_tr_b16 {vr(UR + 4*rr + 2*hf, 2)}, v15 offset:{8192*rr}")
    a("v_lshlrev_b32 v12, 6, v10", f"v_add_u32 v12, {LDS_STAT}, v12")
    for rr in range(2):
        for i in range(4): a(f"ds_read_b128 {vr(SS+16*rr+4*i,4)}, v12 offset:{256*rr + 16*i}")
    a("s_lshl_b32 s8, s5, 18", "s_lshl_b32 s9, s12, 16", "s_add_u32 s8, s8, s9", "s_lshl_b32 s9, s4, 7", "s_add_u32 s8, s8, s9", f"s_add_u32 s8, s8, {UU}")
    a("v_lshlrev_b32 v13, 12, v9", "v_lshl_add_u32 v13, v10, 4, v13")
    a("s_waitcnt lgkmcnt(8)")
    for i in range(8): a(f"v_lshlrev_b32 v{UT+2*i}, 16, v{UR+i}", f"v_and_b32 v{UT+2*i+1}, 0xffff0000, v{UR+i}")
    a("s_waitcnt lgkmcnt(0)")
    for i in range(16): a(f"v_fma_f32 v{UT+i}, v{UT+i}, v{SS+2*i}, v{SS+2*i+1}")
    for i in range(8): a(f"v_cvt_pk_f16_f32 v{UR+i}, v{UT+2*i}, v{UT+2*i+1}")
    a(f"buffer_store_dwordx4 {vr(UR,4)}, v13, s[56:59], s8 offen {ST}")
    a(f"buffer_store_dwordx4 {vr(UR+4,4)}, v13, s[56:59], s8 offen offset:64 {ST}")
    a.stamp(7)
    a("K1_FIN:")
    a.stamp_flush(DBG)
    a("K1_END:", "s_endpgm")
    return N, 168, K1_LDS, 768
```

```python
from asmlib import *
from layout import *
from k1 import srd, f32, spin1

KCOPY = 4160
UOFF = 4 * KCOPY
CH_STRIDE = 4 * KCOPY + 4608
LDS_PART = 2 * CH_STRIDE
PROW = 272
LDS_AO = LDS_PART + 4 * 64 * PROW
AOROW = 144
LDS_EX = LDS_AO + 64 * AOROW
LDS_FLAG = LDS_EX + 16384
K2_LDS = LDS_FLAG + 64
DEPTH = 8
SPIN_MAX = 100000
NOISE = 0
LATE = 15

def gen_k2(a, stamps=False):
    N = "k2_kernel"
    a(f".globl {N}", ".p2align 8", f".type {N},@function", f"{N}:")
    a("s_cmp_ge_u32 s2, 256", "s_cbranch_scc1 K2_END")
    a("s_load_dwordx2 s[16:17], s[0:1], 0", "s_load_dwordx2 s[28:29], s[0:1], 48", "s_load_dwordx2 s[34:35], s[0:1], 80", "s_load_dwordx4 s[36:39], s[0:1], 88", "s_load_dwordx2 s[40:41], s[0:1], 112")
    a.stamp_init(); a.stamp(0)
    a("v_lshrrev_b32 v1, 6, v0", "v_and_b32 v0, 63, v0", "v_readfirstlane_b32 s3, v1")
    a("v_and_b32 v9, 15, v0", "v_lshrrev_b32 v10, 4, v0", "v_lshlrev_b32 v11, 4, v0")
    a("v_mov_b32 v2, 0", "v_lshlrev_b32 v3, 2, v9", f"v_add_u32 v3, {LDS_FLAG}, v3", "ds_write_b32 v3, v2")
    a("s_and_b32 s8, s2, 7", "s_lshr_b32 s9, s2, 3")
    a("s_lshl_b32 s4, s8, 2", "s_lshr_b32 s10, s9, 3", "s_add_u32 s4, s4, s10")
    a("s_and_b32 s5, s9, 7")
    a("s_lshl_b32 s6, s8, 5", "s_add_u32 s6, s6, s9")
    a("s_and_b32 s12, s3, 3")
    a("s_lshr_b32 s13, s3, 2")
    a("s_lshl_b32 s14, s5, 7", "s_lshl_b32 s15, s13, 6", "s_add_u32 s14, s14, s15")
    a("s_lshl_b32 s15, s4, 6", "s_lshl_b32 s10, s12, 4", "s_add_u32 s15, s15, s10")
    a("s_waitcnt lgkmcnt(0)")
    a.stamp(1)
    a("s_barrier")
    a("v_lshlrev_b32 v2, 4, v10", "v_add_u32 v2, s14, v2")
    a("v_add_u32 v3, s15, v9", "v_lshl_add_u32 v3, v3, 10, v2")
    srd(a, 56, 40, WS_BYTES)
    a("s_cmp_ge_u32 s3, 4", "s_cbranch_scc1 K2_G")

    XR = 4
    a.vm_reset()
    a("s_setprio 3")
    a("s_lshr_b32 s13, s12, 1", "s_and_b32 s14, s12, 1")
    a("s_lshl_b32 s15, s6, 1", "s_add_u32 s15, s15, s13")
    a(f"s_mul_i32 s64, s13, {CH_STRIDE}")
    a("s_lshl_b32 s10, s14, 11")
    a(f"s_mul_i32 s8, s15, {KROW}", f"s_add_u32 s8, s8, {KC}", "s_load_dword s66, s[40:41], s8")
    a("s_add_u32 s8, s8, s10", "s_add_u32 s8, s8, 120")
    KR = 48
    for i in range(2):
        a.vmem(f"buffer_load_dwordx2 {vr(KR + 8*i, 2)}, v11, s[56:59], s8 offen offset:{1024*i}", "kr")
        a.vmem(f"buffer_load_dwordx4 {vr(KR + 8*i + 2, 4)}, v11, s[56:59], s8 offen offset:{1024*i + 8}", "kr")
    a("s_add_u32 s9, s64, s10", "s_add_u32 s9, s9, 32")
    a("s_add_u32 s11, s8, 8", "s_mov_b32 m0, s9")
    for i in range(2): a.vmem(f"buffer_load_dwordx4 v11, s[56:59], s11 offen offset:{1024*i} lds", "k")
    a("s_add_u32 s11, s8, 4", f"s_add_u32 m0, s9, {2*KCOPY}")
    for i in range(2): a.vmem(f"buffer_load_dwordx4 v11, s[56:59], s11 offen offset:{1024*i} lds", "k")
    a("s_lshl_b32 s11, s15, 12", "s_add_u32 s11, s11, s10", f"s_add_u32 s11, s11, {UU}", f"s_add_u32 m0, s9, {UOFF + 480 - 32}")
    for i in range(2): a.vmem(f"buffer_load_dwordx4 v11, s[56:59], s11 offen offset:{1024*i} lds", "k")
    a("v_add_u32 v64, s9, v11")
    a("s_lshl_b32 s8, s6, 2", "s_load_dword s67, s[28:29], s8")
    a.vmem(f"global_load_dwordx4 {vr(XR,4)}, v3, s[16:17]", "x")
    a.vmem(f"global_load_dwordx4 v[12:15], v2, s[36:37]", "x")
    for i in range(4): a(f"v_mov_b32 v{20+i}, 0")
    a(f"v_add_u32 v17, {UOFF}, v11")
    a("v_bfe_u32 v18, v0, 1, 2", f"v_mul_u32_u24 v18, {KCOPY}, v18", "v_and_b32 v19, 1, v0", "v_lshl_add_u32 v18, v19, 4, v18")
    a("v_cmp_gt_u32 vcc, 32, v0", "v_cndmask_b32 v17, v18, v17, vcc", "v_add_u32 v17, s64, v17")
    a("s_mov_b32 exec_lo, 0x3fffffff", "s_mov_b32 exec_hi, 0xff")
    a("ds_write_b128 v17, v[20:23]")
    a("s_mov_b64 exec, -1")
    VA, VB, VU, VS, VF = 200, 201, 202, 203, 204
    a("s_lshl_b32 s10, s14, 8")
    a("v_lshrrev_b32 v19, 2, v9", f"v_mul_u32_u24 v19, {KCOPY}, v19", "v_and_b32 v18, 3, v9", "v_lshl_add_u32 v19, v18, 3, v19")
    a("v_lshlrev_b32 v18, 4, v10", "v_sub_u32 v19, v19, v18", f"s_add_u32 s8, s64, {32 + 480 - 8}", "s_sub_u32 s8, s8, s10", f"v_add_u32 v{VA}, s8, v19")
    a("v_lshl_add_u32 v19, v9, 5, v18", f"s_add_u32 s8, s64, {UOFF}", "s_add_u32 s8, s8, s10", f"v_add_u32 v{VB}, s8, v19")
    a("v_lshlrev_b32 v18, 3, v10", f"v_lshl_add_u32 v{VS}, v9, 5, v18", f"s_add_u32 s8, s64, {UOFF + 480}", "s_lshl_b32 s10, s14, 11", "s_add_u32 s8, s8, s10", f"v_add_u32 v{VU}, s8, v{VS}")
    a("s_lshl_b32 s10, s12, 2", f"s_add_u32 s10, s10, {LDS_FLAG}", f"v_mov_b32 v{VF}, s10", f"v_xor_b32 v{VF+1}, 4, v{VF}", f"v_mov_b32 v{VF+2}, 1")
    CA = 16
    FR = 48
    a.stamp(2)
    a.vm_wait("kr")
    for i in range(2):
        r = KR + 8*i; o = 68 + 8*i
        for j in range(4): a(f"v_alignbit_b32 v{o+j}, v{r+j+2}, v{r+j+1}, 16")
        for j in range(4): a(f"v_alignbit_b32 v{o+4+j}, v{r+j+1}, v{r+j}, 16")
        a(f"ds_write_b128 v64, {vr(o,4)} offset:{KCOPY + 1024*i}", f"ds_write_b128 v64, {vr(o+4,4)} offset:{3*KCOPY + 1024*i}")
    a.vm_wait("k")
    a("s_waitcnt lgkmcnt(0)", f"ds_write_b32 v{VF}, v{VF+2}")
    for i in range(32): a(f"v_mov_b32 v{CA+i}, 0")
    spin1(a, VF + 1, 0, 48, 8)
    a.stamp(3)
    def rd(st):
        L = []
        for i in range(8):
            L.append(f"ds_read_b128 {vr(FR + 64*st + 32 + 4*i, 4)}, v{VB} offset:{512*i}")
            L.append(f"ds_read_b64_tr_b16 {vr(FR + 64*st + 4*i, 2)}, v{VA} offset:{512*i + 8}")
            L.append(f"ds_read_b64_tr_b16 {vr(FR + 64*st + 4*i + 2, 2)}, v{VA} offset:{512*i}")
        L.append(f"v_subrev_u32 v{VA}, 64, v{VA}")
        L.append(f"v_add_u32 v{VB}, 64, v{VB}")
        return L
    def mf(st):
        L = []
        for step in range(8):
            for t in range(step, 8):
                d = vr(CA + 4*t, 4)
                L.append(f"v_mfma_f32_16x16x32_f16 {d}, {vr(FR + 64*st + 4*(t - step), 4)}, {vr(FR + 64*st + 32 + 4*step, 4)}, {d}")
        return L
    for l in rd(0): a(l)
    a("s_mov_b32 s8, 2")
    a("K2_CL:")
    for st in range(2):
        a("s_waitcnt lgkmcnt(0)")
        R, M = rd(1 - st), mf(st)
        for i, m in enumerate(M):
            a(m)
            if i < len(R): a(R[i])
    a("s_sub_u32 s8, s8, 1", "s_cmp_lg_u32 s8, 0", "s_cbranch_scc1 K2_CL")
    a.stamp(4)
    a("s_lshl_b32 s10, s12, 12", f"s_add_u32 s10, s10, {LDS_EX}", "v_add_u32 v196, s10, v11", "v_xor_b32 v197, 0x1000, v196" if LDS_EX % 8192 == 0 else "s_xor_b32 s9, s12, 1")
    if LDS_EX % 8192: a("s_lshl_b32 s9, s9, 12", f"s_add_u32 s9, s9, {LDS_EX}", "v_add_u32 v197, s9, v11")
    a("s_nop 3")
    a("s_cmp_eq_u32 s14, 0", "s_cbranch_scc1 K2_NOSWAP")
    for i in range(16): a(f"v_swap_b32 v{CA+i}, v{CA+16+i}")
    a("K2_NOSWAP:")
    for k in range(4): a(f"ds_write_b128 v196, {vr(CA+16+4*k,4)} offset:{1024*k}")
    a("s_waitcnt lgkmcnt(0)", f"ds_write_b32 v{VF}, v{VF+2} offset:16")
    for k in range(4): a(f"ds_read_b64 {vr(FR + 2*k, 2)}, v{VU} offset:{512*k}")
    a("s_lshl_b32 s10, s13, 4", "s_lshr_b32 s67, s67, s10", "s_lshl_b32 s67, s67, 16")
    a("s_lshl_b32 s8, s15, 12", "s_lshl_b32 s10, s14, 11", "s_add_u32 s8, s8, s10", f"s_add_u32 s8, s8, {AO}")
    spin1(a, VF + 1, 16, 60, 9)
    PB = FR + 32
    for k in range(4): a(f"ds_read_b128 {vr(PB+4*k,4)}, v197 offset:{1024*k}")
    T = FR + 16
    for k in range(4):
        for e in range(4):
            a(f"v_fma_mix_f32 v{T+4*k+e}, v{FR+2*k+(e>>1)}, s67, 0 op_sel:[{e&1},0,0] op_sel_hi:[1,0,0]")
    for k in range(4):
        a(f"s_waitcnt lgkmcnt({3-k})")
        for e in range(4): a(f"v_add_f32 v{CA+4*k+e}, v{CA+4*k+e}, v{PB+4*k+e}")
        for e in range(4): a(f"v_fmac_f32 v{T+4*k+e}, s66, v{CA+4*k+e}")
        for h in range(2): a(f"v_cvt_pk_bf16_f32 v{FR+2*k+h}, v{T+4*k+2*h}, v{T+4*k+2*h+1}")
        a(f"buffer_store_dwordx2 {vr(FR+2*k,2)}, v{VS}, s[56:59], s8 offen offset:{512*k} sc1")
    a("s_setprio 0")
    a.stamp(5)
    a("v_lshrrev_b32 v22, 3, v0", "v_and_b32 v23, 7, v0", "v_lshlrev_b32 v24, 12, v22", "v_lshl_add_u32 v24, v23, 4, v24")
    a(f"v_mul_u32_u24 v25, {AOROW}, v22", "v_lshl_add_u32 v25, v23, 4, v25", f"s_mul_i32 s10, s12, {16*AOROW}", f"s_add_u32 s10, s10, {LDS_AO}", "v_add_u32 v25, s10, v25")
    a("s_lshl_b32 s9, s5, 18", "s_lshl_b32 s10, s12, 16", "s_add_u32 s9, s9, s10", "s_lshl_b32 s10, s4, 7", "s_add_u32 s9, s9, s10", f"s_add_u32 s9, s9, {AO}")
    a("s_add_u32 s10, s9, 0x8000")
    a(f"s_mov_b32 s11, {SPIN_MAX}")
    spin1(a, VF, 32, 26, 8, sleep=2)
    a("K2_POLL:")
    a("buffer_load_dwordx4 v[28:31], v24, s[56:59], s9 offen sc1")
    a("buffer_load_dwordx4 v[32:35], v24, s[56:59], s10 offen sc1")
    a("s_waitcnt vmcnt(0)")
    a("v_max3_u32 v26, v28, v29, v30", "v_max3_u32 v27, v31, v32, v33", "v_max3_u32 v26, v26, v34, v35", "v_max_u32 v26, v26, v27")
    a("v_cmp_eq_u32 vcc, -1, v26", "s_sub_u32 s11, s11, 1", "s_cbranch_scc1 K2_POLLED", "s_nop 2", "s_cbranch_vccz K2_POLLED", "s_sleep 8", "s_branch K2_POLL")
    a("K2_POLLED:")
    a.stamp(6)
    a("ds_write_b128 v25, v[28:31]", f"ds_write_b128 v25, v[32:35] offset:{8*AOROW}")
    a("s_branch K2_FINAL")

    a("K2_G:")
    a.vm_reset()
    ACC = 16
    PF = 80
    WF = 144
    VW, VT = 160, 162
    srd(a, 52, 34, 1376 * 512 * 2)
    a("s_mul_i32 s8, s12, 22", "s_cmp_eq_u32 s12, 3", "s_subb_u32 s8, s8, 0")
    a("s_mul_i32 s9, s4, 172", "s_add_u32 s9, s9, s8", "s_lshl_b32 s68, s9, 10", f"s_add_u32 s68, s68, {HF}", f"s_add_u32 s69, s68, {86*1024}")
    a("s_lshl_b32 s70, s8, 14", "s_lshl_b32 s9, s5, 7", "s_add_u32 s70, s70, s9")
    a(f"s_mul_i32 s64, s12, {64*PROW}", f"s_add_u32 s64, s64, {LDS_PART}")
    a("v_lshrrev_b32 v1, 3, v0", "v_and_b32 v8, 7, v0", "v_bfe_u32 v16, v0, 4, 1", "v_lshlrev_b32 v16, 2, v16", "v_xor_b32 v8, v8, v16")
    a("v_lshlrev_b32 v1, 10, v1", f"v_lshl_add_u32 v{VW}, v8, 4, v1", f"v_add_u32 v{VW+1}, 8192, v{VW}")
    def ld(n):
        b = PF + 8 * (n % DEPTH)
        L = []
        for i in range(2):
            L.append(([], f"buffer_load_dwordx4 {vr(b + 4*i, 4)}, v11, s[56:59], s{68+i} offen offset:{(n & 3) * 1024}", []))
        L.append(([f"s_add_u32 m0, s64, {(n % DEPTH) * 2048}"], f"buffer_load_dwordx4 v{VW}, s[52:55], s70 offen lds", []))
        post = ["s_add_u32 s70, s70, 16384"]
        if n & 3 == 3: post += ["s_add_u32 s68, s68, 4096", "s_add_u32 s69, s69, 4096"]
        L.append(([f"s_add_u32 m0, s64, {(n % DEPTH) * 2048 + 1024}"], f"buffer_load_dwordx4 v{VW+1}, s[52:55], s70 offen lds", post))
        return [(n,) + x for x in L]
    def emit(x):
        n, pre, ins, post = x
        a(*pre); a.vmem(ins, ("g", n)); a(*post)
    for n in range(DEPTH):
        for x in ld(n): emit(x)
    a.vmem(f"global_load_dwordx4 {vr(XR,4)}, v3, s[16:17]", "x")
    a.vmem(f"global_load_dwordx4 v[12:15], v2, s[36:37]", "x")
    a("v_lshrrev_b32 v1, 1, v10", "v_lshrrev_b32 v8, 2, v9", "v_lshl_add_u32 v1, v1, 3, v8", "v_lshlrev_b32 v1, 7, v1")
    a("v_and_b32 v8, 1, v10", "v_lshl_add_u32 v1, v8, 5, v1", "v_and_b32 v8, 3, v9", "v_lshl_add_u32 v1, v8, 3, v1")
    a("v_bfe_u32 v8, v9, 3, 1", "v_lshl_add_u32 v1, v8, 6, v1", f"v_add_u32 v{VT}, s64, v1", "v_xor_b32 v1, 64, v1", f"v_add_u32 v{VT+1}, s64, v1")
    a("v_and_b32 v1, 31, v0", f"v_mul_u32_u24 v1, {PROW}, v1", "v_lshrrev_b32 v8, 5, v0", "v_lshl_add_u32 v1, v8, 4, v1", "v_add_u32 v1, s64, v1")
    a("s_lshl_b32 s10, s12, 2", f"s_add_u32 s10, s10, {LDS_FLAG + 32}", f"v_mov_b32 v{VT+2}, s10", f"v_mov_b32 v{VT+3}, 1")
    def trs(n):
        for dt in range(2):
            for hf in range(2):
                a(f"ds_read_b64_tr_b16 {vr(WF + 8*(n & 1) + 4*dt + 2*hf, 2)}, v{VT+dt} offset:{(n % DEPTH) * 2048 + 512*hf}")
    a.stamp(2)
    a.vm_wait(("g", 0))
    a.stamp(3)
    trs(0)
    for n in range(22):
        b = PF + 8 * (n % DEPTH)
        if n + 1 < 22: a.vm_wait(("g", n + 1))
        a("s_waitcnt lgkmcnt(0)")
        if n + 1 < 22: trs(n + 1)
        if n == 11: a.stamp(5)
        if n == LATE: a(f"ds_write_b32 v{VT+2}, v{VT+3}")
        if n == 21: a("s_cmp_ge_u32 s12, 2", "s_cbranch_scc1 K2_GDONE")
        L = ld(n - 1 + DEPTH) if (n >= 1 and n - 1 + DEPTH < 22) else []
        for dt in range(2):
            for lt in range(2):
                d = vr(ACC + 32*dt + 16*lt, 16)
                a(f"v_mfma_f32_32x32x16_bf16 {d}, {vr(WF + 8*(n & 1) + 4*dt, 4)}, {vr(b + 4*lt, 4)}, {d if n else 0}")
                if L: emit(L.pop(0))
    a("K2_GDONE:")
    a("s_nop 7", "s_nop 3")
    a.stamp(4)
    for dt in range(2):
        for lt in range(2):
            for q in range(4):
                a(f"ds_write_b128 v1, {vr(ACC + 32*dt + 16*lt + 4*q, 4)} offset:{lt*32*PROW + dt*128 + q*32}")

    a("K2_FINAL:")
    a("s_lshr_b32 s13, s3, 2")
    a("s_lshl_b32 s8, s12, 4", "v_add_u32 v96, s8, v9", f"v_mul_u32_u24 v96, {PROW}, v96", "v_lshl_add_u32 v96, v10, 5, v96")
    a("s_lshl_b32 s8, s13, 7", f"s_add_u32 s8, s8, {LDS_PART}", "v_add_u32 v96, s8, v96")
    a("v_lshrrev_b32 v97, 2, v9", "v_lshl_add_u32 v97, v10, 3, v97", f"v_mul_u32_u24 v97, {AOROW}, v97", "v_and_b32 v98, 3, v9", "v_lshl_add_u32 v97, v98, 3, v97")
    a(f"s_mul_i32 s8, s13, {32*AOROW}", "s_lshl_b32 s9, s12, 5", "s_add_u32 s8, s8, s9", f"s_add_u32 s8, s8, {LDS_AO}", "v_add_u32 v97, s8, v97")
    XU = 80; BU = 88
    a("s_waitcnt vmcnt(0)")
    for i in range(4):
        a(f"v_lshlrev_b32 v{XU+2*i}, 16, v{XR+i}", f"v_and_b32 v{XU+2*i+1}, 0xffff0000, v{XR+i}")
        a(f"v_lshlrev_b32 v{BU+2*i}, 16, v{12+i}", f"v_and_b32 v{BU+2*i+1}, 0xffff0000, v{12+i}")
    for i in range(8): a(f"v_add_f32 v{XU+i}, v{XU+i}, v{BU+i}")
    a("s_waitcnt lgkmcnt(0)", "s_barrier")
    a.stamp(7)
    Q = 24
    a("ds_read_b64_tr_b16 v[20:21], v97", f"ds_read_b64_tr_b16 v[22:23], v97 offset:{4*AOROW}")
    for w in range(4):
        for h in range(2): a(f"ds_read_b128 {vr(Q + 8*w + 4*h, 4)}, v96 offset:{w*64*PROW + 16*h}")
    a("s_waitcnt lgkmcnt(8)")
    for i in range(4): a(f"v_lshlrev_b32 v{BU+2*i}, 16, v{20+i}", f"v_and_b32 v{BU+2*i+1}, 0xffff0000, v{20+i}")
    for i in range(4): a(f"v_pk_add_f32 {vr(XU+2*i,2)}, {vr(XU+2*i,2)}, {vr(BU+2*i,2)}")
    for w in range(4):
        a(f"s_waitcnt lgkmcnt({6 - 2*w})")
        for i in range(4): a(f"v_pk_add_f32 {vr(XU+2*i,2)}, {vr(XU+2*i,2)}, {vr(Q+8*w+2*i,2)}")
    for i in range(4): a(f"v_cvt_pk_bf16_f32 v{20+i}, v{XU+2*i}, v{XU+2*i+1}")
    a("global_store_dwordx4 v3, v[20:23], s[38:39]")
    a.stamp_flush(DBG + 0x40000)
    a("K2_END:", "s_endpgm")
    return N, 208, K2_LDS, 512
```

```python
HF   = 0x000000
W2F  = 0x600000
UU   = 0x800000
KC   = 0xA00000
KROW = 2048
KS   = 0xF00000
FLG  = 0xF01000
AO   = 0x1000000
DBG  = 0x1400000
WS_BYTES = 0x10000000
NAME = "parallel_sum__ssm_conv_s4d__dense_activation_squared_relu__prompt"
```

```python
import build, importlib, sys
src = open("k1.py").read()
def noa(s): return s.replace('''    if APRIO: a(f"s_setprio {APRIO}")''', '''    a("s_branch K1_FIN")''')
V = {"v1": src, "v2": src.replace("DIST = 3", "DIST = 4"), "v3": noa(src), "v4": noa(src).replace("DIST = 3", "DIST = 4"), "v5": src.replace("GPRIO = 1", "GPRIO = 0")}
for nm, s in V.items():
    open(f"k1_{nm}.py", "w").write(s)
    build.k1 = importlib.import_module(f"k1_{nm}")
    build.build(f"st_k1_{nm}.s", True)
```

```python
import re

TRANS = ("v_exp_f32", "v_log_f32", "v_rcp_f32", "v_rsq_f32", "v_sqrt_f32", "v_sin_f32", "v_cos_f32", "v_rcp_iflag_f32")

def regs_of(tok):
    tok = tok.strip()
    tok = re.sub(r"^(-|abs\(|\|)+", "", tok).rstrip(")|")
    m = re.fullmatch(r"([vsa])(\d+)", tok)
    if m: return {(m.group(1), int(m.group(2)))}
    m = re.fullmatch(r"([vsa])\[(\d+):(\d+)\]", tok)
    if m: return {(m.group(1), i) for i in range(int(m.group(2)), int(m.group(3)) + 1)}
    if tok == "vcc": return {("s", 106), ("s", 107)}
    if tok == "vcc_lo": return {("s", 106)}
    if tok == "vcc_hi": return {("s", 107)}
    if tok == "m0": return {("m", 0)}
    if tok == "exec": return {("e", 0)}
    return set()

def split_ops(s):
    out, depth, cur = [], 0, ""
    for ch in s:
        if ch in "[(": depth += 1
        if ch in "])": depth -= 1
        if ch == "," and depth == 0:
            out.append(cur.strip()); cur = ""
        else: cur += ch
    if cur.strip(): out.append(cur.strip())
    return out

class Ins:
    def __init__(self, text):
        self.text = text
        t = text.split(";")[0].strip()
        parts = t.split(None, 1)
        self.mn = parts[0]
        rest = parts[1] if len(parts) > 1 else ""
        ops = split_ops(rest)
        self.mods = ""
        if ops:
            last = ops[-1].split(None, 1)
            ops[-1] = last[0]
            self.mods = last[1] if len(last) > 1 else ""
        self.ops = ops
        mn = self.mn
        self.is_mfma = mn.startswith("v_mfma")
        self.is_valu = mn.startswith("v_") and not self.is_mfma
        self.is_dot = mn.startswith("v_dot")
        self.is_trans = any(mn.startswith(x) for x in TRANS)
        self.is_ds = mn.startswith("ds_")
        self.is_vmem = mn.startswith(("buffer_", "global_", "flat_"))
        self.is_salu = mn.startswith("s_")
        self.is_dpp = "_dpp" in mn or "quad_perm" in self.mods or "row_" in self.mods
        self.is_perm = mn.startswith("v_permlane")
        self.is_rl = mn.startswith(("v_readlane", "v_readfirstlane"))
        self.ldsdma = self.is_vmem and (re.search(r"\blds\b", self.mods) is not None or "_lds_" in mn)
        R = [regs_of(o) for o in ops]
        self.w, self.r = set(), set()
        self.srcc = set(); self.srcab = set(); self.stdata = set()
        if self.is_mfma:
            self.w = R[0]; self.srcab = R[1] | R[2]; self.srcc = R[3]; self.r = self.srcab | self.srcc
            self.passes = 8 if "32x32" in mn else 4
        elif self.is_valu:
            if "swap" in mn:
                self.w = R[0] | R[1]; self.r = R[0] | R[1]
            elif re.match(r"v_(add|sub|subrev|addc|subb|subbrev)_co", mn) or mn.startswith(("v_div_scale", "v_mad_u64")):
                self.w = R[0] | R[1]; self.r = set().union(*R[2:])
            else:
                self.w = R[0]; self.r = set().union(*R[1:]) if len(R) > 1 else set()
                if mn.startswith(("v_fmac", "v_dot2c", "v_pk_fmac", "v_writelane")) or self.is_dpp or "UNUSED_PRESERVE" in self.mods: self.r |= R[0]
                if mn.startswith("v_cndmask") and len(ops) == 3: self.r |= regs_of("vcc")
            if mn.startswith("v_cmpx"): self.w |= {("e", 0)}
        elif self.is_ds:
            if mn.startswith(("ds_read", "ds_bpermute", "ds_permute", "ds_swizzle")) or "_rtn" in mn:
                self.w = R[0]; self.r = set().union(*R[1:])
            else: self.r = set().union(*R)
        elif self.is_vmem:
            if "load" in mn and not self.ldsdma:
                self.w = R[0]; self.r = set().union(*R[1:])
            elif "atomic" in mn and "sc0" in self.mods and mn.startswith("global"):
                self.w = R[0]; self.r = set().union(*R[1:])
            else:
                self.r = set().union(*R)
                if "store" in mn and ("x3" in mn or "x4" in mn):
                    self.stdata = R[0] if mn.startswith("buffer") else R[1]
            if self.ldsdma: self.r |= {("m", 0)}
        elif self.is_salu:
            if mn.startswith(("s_cmp", "s_cbranch", "s_branch", "s_waitcnt", "s_nop", "s_barrier", "s_endpgm", "s_sleep", "s_setprio", "s_bitcmp")):
                self.r = set().union(*R) if R else set()
            else:
                self.w = R[0] if R else set(); self.r = set().union(*R[1:]) if len(R) > 1 else set()
                if "saveexec" in mn: self.w |= {("e", 0)}
        self.states = 1
        if mn == "s_nop": self.states = int(ops[0], 0) + 1

def need(p, c):
    n = 0
    vw = {x for x in p.w if x[0] in "va"}
    sw = {x for x in p.w if x[0] == "s"}
    if p.is_valu:
        if c.is_mfma and vw & c.r: n = max(n, 3 if p.is_dot else 2)
        if p.is_trans and c.is_valu and vw & (c.r): n = max(n, 1)
        if p.is_trans and (c.is_ds or c.is_vmem) and vw & c.r: n = max(n, 1)
        if c.is_valu and c.is_dpp and vw & c.r: n = max(n, 2)
        if c.is_perm and vw & c.r: n = max(n, 2)
        if c.is_rl and vw & c.r: n = max(n, 1)
        if sw and c.is_valu and sw & c.r: n = max(n, 4 if c.is_rl else 2)
        if sw and c.is_vmem and sw & c.r: n = max(n, 5)
        if sw and c.is_salu and sw & c.r: n = max(n, 1)
        if p.is_dot and (vw & (c.r | c.w)) and not (c.mn == p.mn and c.ops[-1] == p.ops[0] and not (vw & (regs_of(c.ops[1]) | regs_of(c.ops[2])))): n = max(n, 3)
        if ("e", 0) in p.w and (c.is_mfma or c.is_rl or c.is_perm): n = max(n, 4)
        if ("e", 0) in p.w and c.is_dpp: n = max(n, 5)
        if ("sdwa" in p.mn or "op_sel" in p.mods and not p.mn.startswith("v_pk")) and c.is_valu and vw & (c.r | c.w): n = max(n, 1)
    if p.is_mfma:
        big = p.passes == 8
        if c.is_mfma:
            if vw & c.srcab: n = max(n, 12 if big else 8)
            if vw & c.srcc and not (c.srcc == p.w and c.passes == p.passes): n = max(n, 10 if big else 6)
            if vw & c.w and not (c.w == p.w): n = max(n, 10 if big else 6)
        elif (c.is_valu or c.is_ds or c.is_vmem) and vw & (c.r | c.w): n = max(n, 12 if big else 8)
        if c.is_valu and p.srcc & c.w: n = max(n, 7 if big else 3)
    if p.is_salu and ("m", 0) in p.w and c.ldsdma: n = max(n, 1)
    if p.stdata and (c.w & p.stdata): n = max(n, 2 if c.is_valu else 1)
    return n

class Asm:
    def __init__(self):
        self.lines = []
        self.vm = []
        self.uid = 0
        self.lg = []
        self.fine = False
        self.tail = []
        self.stamps = False
    def __call__(self, *texts):
        for t in texts:
            for l in t.split("\n"):
                l = l.strip()
                if not l: continue
                if l.endswith(":") or l.startswith(".") or l.startswith(";"): self.lines.append(("raw", l))
                else: self.lines.append(("ins", l))
    def label(self, base="L"):
        self.uid += 1
        return f"{base}_{self.uid}"
    def vmem(self, text, tag=None):
        self(text); self.vm.append(tag)
    def vm_wait(self, tag):
        idx = max(i for i, t in enumerate(self.vm) if t == tag)
        n = len(self.vm) - 1 - idx
        self(f"s_waitcnt vmcnt({min(n, 63)})")
        self.vm = self.vm[idx + 1:]
    def ds(self, text, tag=None):
        self(text); self.lg.append(tag)
    def lg_wait(self, tag):
        idx = [i for i, t in enumerate(self.lg) if t == tag]
        if not idx: return
        n = len(self.lg) - 1 - max(idx)
        self(f"s_waitcnt lgkmcnt({min(n, 15)})")
        self.lg = self.lg[max(idx) + 1:]
    def stamp(self, i):
        if self.stamps: self(f"s_memrealtime s[{84+2*i}:{85+2*i}]")
    def fstamp(self, i):
        if self.stamps and self.fine and i < 13: self(f"s_memrealtime s[{16+2*i}:{17+2*i}]")
    def stamp_init(self):
        if self.stamps:
            for i in range(9): self(f"s_mov_b32 s{84+2*i}, 0")
            self("s_memtime s[42:43]")
    def stamp_flush(self, off):
        if not self.stamps: return
        self("s_waitcnt vmcnt(0)", "s_memrealtime s[100:101]", "s_memtime s[8:9]", "s_waitcnt lgkmcnt(0)", "s_sub_u32 s8, s8, s42", "v_mov_b32 v21, s8")
        for i in range(9): self(f"v_mov_b32 v{12+i}, s{84+2*i}")
        self("v_mov_b32 v11, 0", "s_lshl_b32 s8, s2, 4", "s_add_u32 s8, s8, s3", "s_lshl_b32 s8, s8, 6", f"s_add_u32 s8, s8, {off}")
        self("s_mov_b64 exec, 1")
        for i in range(3): self(f"buffer_store_dwordx4 v[{12+4*i}:{15+4*i}], v11, s[56:59], s8 offen offset:{16*i}")
        if self.fine:
            for i in range(13): self(f"v_mov_b32 v{24+i}, s{16+2*i}")
            self("s_add_u32 s8, s8, 0x80000")
            for i in range(4): self(f"buffer_store_dwordx4 v[{24+4*i}:{27+4*i}], v11, s[56:59], s8 offen offset:{16*i}")
    def vm_reset(self, tags=()):
        self.vm = list(tags)
    def render(self):
        out, hist = [], []
        for kind, l in self.lines:
            if kind == "raw":
                out.append(l)
                continue
            c = Ins(l)
            dist, pad = 0, 0
            for p in reversed(hist):
                if dist >= 20: break
                pad = max(pad, need(p, c) - dist)
                dist += p.states
            while pad > 0:
                k = min(pad, 16)
                nop = Ins(f"s_nop {k - 1}")
                out.append("    " + nop.text); hist.append(nop); pad -= k
            out.append("    " + l); hist.append(c)
            if len(hist) > 40: hist = hist[-40:]
        return "\n".join(out) + "\n"

def vr(a, n=1): return f"v{a}" if n == 1 else f"v[{a}:{a + n - 1}]"
def sr(a, n=1): return f"s{a}" if n == 1 else f"s[{a}:{a + n - 1}]"

def descriptor(name, vgpr, sgpr=102):
    acc = (vgpr + 3) // 4 * 4
    return f""".p2align 6
.amdhsa_kernel {name}
  .amdhsa_next_free_vgpr {vgpr}
  .amdhsa_next_free_sgpr {sgpr}
  .amdhsa_accum_offset {acc}
  .amdhsa_group_segment_fixed_size 0
  .amdhsa_kernarg_size 120
  .amdhsa_user_sgpr_count 2
  .amdhsa_user_sgpr_kernarg_segment_ptr 1
  .amdhsa_system_sgpr_workgroup_id_x 1
  .amdhsa_ieee_mode 0
.end_amdhsa_kernel
"""
```

```python
from asmlib import *
from layout import *
import struct

def f32(x): return "0x%08x" % struct.unpack("<I", struct.pack("<f", x))[0]
L2E = 1.4426950408889634
L2E_HI = struct.unpack("<f", struct.pack("<f", L2E))[0]
L2E_LO = L2E - L2E_HI
LN2 = 0.6931471805599453

NS = 8
DIST = 3
STAGE = 12288
LDS_RING = 49152
LDS_A = LDS_RING + NS * STAGE
A_STRIDE = 2048
LDS_STAT = LDS_A + 4 * A_STRIDE
LDS_FLAG = LDS_STAT + 512
K1_LDS = LDS_FLAG + 64
ST = "sc1"
APRIO = 0
GPRIO = 1
LPRIO = 2
PFMODE = 1
L2PF = 0
RPG = 1
CODEPF = 1
ROT = 1
AWAIT = 12
STA = "sc1"
SENT = 1

def srd(a, d, base, nbytes):
    a(f"s_mov_b32 s{d}, s{base}", f"s_mov_b32 s{d+1}, s{base+1}", f"s_mov_b32 s{d+2}, {hex(nbytes)}", f"s_mov_b32 s{d+3}, 0x00020000")

def exp_bf16(a, dst, src, t0, t1):
    a(f"v_mul_f32 v{t0}, s60, v{src}")
    a(f"v_fma_f32 v{t1}, v{src}, s60, -v{t0}")
    a(f"v_fmac_f32 v{t1}, s61, v{src}")
    a(f"v_exp_f32 v{t0}, v{t0}")
    a(f"v_mul_f32 v{t1}, s62, v{t1}")
    a(f"v_fmac_f32 v{t0}, v{t0}, v{t1}")
    a(f"v_cvt_pk_bf16_f32 v{t0}, v{t0}, v{t0}")
    a(f"v_and_b32 v{dst}, 0xffff0000, v{t0}")

def min4(a, t, s):
    a(f"v_min3_u32 v{t}, v{t}, v{t+1}, v{t+2}", f"v_min_u32 v{t}, v{t}, v{t+3}", f"v_readfirstlane_b32 s{s}, v{t}")

def spin4(a, vaddr, off, t, s, target=1, sleep=0):
    lab = a.label("SPIN")
    a(f"{lab}:")
    if sleep: a(f"s_sleep {sleep}")
    a(f"ds_read_b128 {vr(t,4)}, v{vaddr} offset:{off}", "s_waitcnt lgkmcnt(0)")
    min4(a, t, s)
    a(f"s_cmp_lt_u32 s{s}, {target}", f"s_cbranch_scc1 {lab}")

def spin1(a, vaddr, off, t, s, sleep=0):
    lab = a.label("SPIN")
    a(f"{lab}:")
    if sleep: a(f"s_sleep {sleep}")
    a(f"ds_read_b32 v{t}, v{vaddr} offset:{off}", "s_waitcnt lgkmcnt(0)", f"v_readfirstlane_b32 s{s}, v{t}", f"s_cmp_eq_u32 s{s}, 0", f"s_cbranch_scc1 {lab}")

RA = 132
KA = 136
def kloop(a, niter, label):
    OPB = 16
    YH = 24
    OPA = 28
    RC = 44
    Y = 68
    J4 = range(4)
    yr = lambda j: Y + 3*j
    yi = lambda j: Y + 3*j + 1
    tt = lambda j: Y + 3*j + 2
    def sq():
        for j in J4: a(f"v_mul_f32 v{tt(j)}, v{yi(j)}, v{yi(j)}")
        for j in J4: a(f"v_mul_f32 v{yi(j)}, v{yr(j)}, v{yi(j)} mul:2")
        for j in J4: a(f"v_fma_f32 v{yr(j)}, v{yr(j)}, v{yr(j)}, -v{tt(j)}")
    def cvt(dst):
        for j in J4: a(f"v_cvt_pk_f16_f32 v{dst+j}, v{yr(j)}, v{yi(j)}")
    def xmul(k):
        for j in J4: a(f"v_pk_mul_f16 v{OPA+4*k+j}, v{RC+8+4*k+j}, v{YH+j} op_sel:[1,1] op_sel_hi:[1,0]")
        for j in J4: a(f"v_pk_fma_f16 v{OPA+4*k+j}, v{RC+8+4*k+j}, v{YH+j}, v{OPA+4*k+j} op_sel:[0,0,0] op_sel_hi:[0,1,1] neg_lo:[0,0,1] neg_hi:[1,0,1]")
    for i in range(2): a(f"ds_read_b128 {vr(RC+4*i,4)}, v{RA} offset:{64*i}")
    a(f"s_mov_b32 s8, {niter}")
    a(f"{label}:")
    a("s_waitcnt lgkmcnt(0)")
    for j in J4: a(f"v_mul_f32 v{tt(j)}, v{RC+j}, v{RA+1}", f"v_mul_f32 v{yi(j)}, v{RC+4+j}, v{RA+1}")
    for i in range(2, 6): a(f"ds_read_b128 {vr(RC+4*i,4)}, v{RA} offset:{64*i}")
    for i in range(2): a(f"ds_read_b128 {vr(RC+4*i,4)}, v{RA} offset:{64*i + 384}")
    a(f"v_add_u32 v{RA}, 384, v{RA}")
    for j in J4: a(f"v_exp_f32 v{tt(j)}, v{tt(j)}", f"v_cos_f32 v{yr(j)}, v{yi(j)}", f"v_sin_f32 v{yi(j)}, v{yi(j)}")
    for j in J4: a(f"v_mul_f32 v{yr(j)}, v{yr(j)}, v{tt(j)}", f"v_mul_f32 v{yi(j)}, v{yi(j)}, v{tt(j)}")
    cvt(OPB); sq(); sq(); cvt(OPB + 4); sq(); sq(); cvt(YH)
    a("s_waitcnt lgkmcnt(0)")
    xmul(0); xmul(1); sq()
    for k in range(2): a(f"v_mfma_f32_16x16x32_f16 {vr(KA+4*k,4)}, {vr(OPB,4)}, {vr(OPA+4*k,4)}, {vr(KA+4*k,4)}")
    sq(); cvt(YH); xmul(2); xmul(3)
    a("s_sub_u32 s8, s8, 1", "s_cmp_lg_u32 s8, 0")
    for k in (2, 3): a(f"v_mfma_f32_16x16x32_f16 {vr(KA+4*k,4)}, {vr(OPB+4,4)}, {vr(OPA+4*k,4)}, {vr(KA+4*k,4)}")
    a(f"s_cbranch_scc1 {label}")

def gen_k1(a, stamps=False):
    N = "k1_kernel"
    a(f".globl {N}", ".p2align 8", f".type {N},@function", f"{N}:")
    a("s_cmp_ge_u32 s2, 256", "s_cbranch_scc1 K1_END")
    a("s_load_dwordx16 s[16:31], s[0:1], 0", "s_load_dwordx8 s[32:39], s[0:1], 64", "s_load_dwordx2 s[40:41], s[0:1], 112")
    a.stamp_init(); a.stamp(0)
    a("v_lshrrev_b32 v1, 6, v0", "v_and_b32 v0, 63, v0", "v_readfirstlane_b32 s3, v1")
    a("v_and_b32 v9, 15, v0", "v_lshrrev_b32 v10, 4, v0", "v_lshlrev_b32 v11, 4, v0")
    a("v_mov_b32 v2, 0", "v_lshlrev_b32 v3, 2, v9", f"v_add_u32 v3, {LDS_FLAG}, v3", "ds_write_b32 v3, v2")
    a("s_and_b32 s8, s2, 7", "s_lshr_b32 s7, s2, 3")
    a("s_lshr_b32 s4, s8, 1", "s_lshl_b32 s4, s4, 3", "s_lshr_b32 s10, s7, 2", "s_add_u32 s4, s4, s10")
    a("s_and_b32 s5, s8, 1", "s_lshl_b32 s5, s5, 2", "s_and_b32 s10, s7, 3", "s_add_u32 s5, s5, s10")
    a("s_mul_i32 s6, s5, 5", "s_cmp_ge_u32 s5, 4", "s_addc_u32 s6, s6, 0", "s_cmp_ge_u32 s5, 7", "s_addc_u32 s6, s6, 0")
    a("s_and_b32 s12, s3, 3")
    a(f"v_mov_b32 v8, {LDS_FLAG}", "s_lshl_b32 s10, s12, 2", "v_add_u32 v7, s10, v8", "v_mov_b32 v6, 1")
    a("s_cmp_lt_u32 s3, 4", "s_cbranch_scc1 K1_A")
    a("s_cmp_lt_u32 s3, 8", "s_cbranch_scc1 K1_L")

    a.vm_reset()
    XA = 2
    ONES = 108
    GV = 112
    a("s_lshl_b32 s13, s6, 6", "s_mul_i32 s14, s12, 96", "s_add_u32 s13, s13, s14")
    a("v_lshlrev_b32 v12, 3, v10", "v_add_u32 v12, s13, v12")
    a("s_waitcnt lgkmcnt(0)")
    a.stamp(1)
    for ft in range(3):
        a.vmem(f"global_load_dwordx2 {vr(GV+6+2*ft, 2)}, v12, s[34:35] offset:{32*ft}", "b1")
    a("s_barrier")
    srd(a, 56, 40, WS_BYTES)
    if L2PF:
        srd(a, 48, 32, 512 * 1376 * 2)
        srd(a, 44, 16, 2048 * 512 * 2)
        a("s_lshr_b32 s73, s7, 2", "s_lshr_b32 s8, s5, 1", "s_lshl_b32 s8, s8, 2", "s_add_u32 s8, s8, s73", "s_add_u32 s8, s8, 8")
        a("s_and_b32 s74, s8, 15", "s_mul_i32 s74, s74, 88064")
        a("s_add_u32 s8, s8, 8", "s_and_b32 s75, s8, 15", "s_mul_i32 s75, s75, 88064", "s_cmp_ge_u32 s73, 4", "s_cselect_b32 s75, 0x7f000000, s75")
        a("s_lshl_b32 s76, s6, 6", "s_mul_i32 s14, s12, 192")
        for i in range(3):
            a(f"s_add_u32 s8, s14, {64*i}", "v_add_u32 v14, s8, v0", "v_mul_u32_u24 v15, 2731, v14", "v_lshrrev_b32 v15, 16, v15")
            a("v_mul_u32_u24 v15, 2368, v15", "v_lshl_add_u32 v14, v14, 4, v15", f"v_add_u32 v{16+i}, s76, v14")
        for i in range(3): a.vmem(f"buffer_load_dwordx4 v[156:159], v{16+i}, s[48:51], s74 offen")
        if L2PF >= 2:
            a("s_lshl_b32 s8, s4, 16", "s_and_b32 s9, s7, 3", "s_lshl_b32 s9, s9, 14", "s_add_u32 s8, s8, s9", "s_lshl_b32 s9, s12, 12", "s_add_u32 s8, s8, s9")
            for i in range(4): a.vmem(f"buffer_load_dwordx4 v[160:163], v11, s[44:47], s8 offen offset:{1024*i}")
        for i in range(3): a.vmem(f"buffer_load_dwordx4 v[164:167], v{16+i}, s[48:51], s75 offen")
    for q in range(4):
        a(f"v_add_u32 v12, {4*q}, v10", "v_xor_b32 v12, v12, v9", "v_lshlrev_b32 v12, 4, v12", f"v_lshl_add_u32 v{XA+q}, v9, 8, v12")
    a("v_lshrrev_b32 v12, 2, v9", "v_lshl_add_u32 v12, v10, 2, v12", "v_bfe_u32 v13, v12, 1, 2", "v_mul_u32_u24 v12, 384, v12")
    a("v_and_b32 v14, 3, v9", "v_lshl_add_u32 v12, v14, 3, v12", f"v_add_u32 v12, {LDS_RING}, v12", "s_mul_i32 s8, s12, 3")
    for ft in range(3):
        a(f"s_add_u32 s9, s8, {ft}", "v_xor_b32 v14, s9, v13", f"v_lshl_add_u32 v{GV+ft}, v14, 5, v12")
    for ft in range(3): a(f"v_add_u32 v{GV+3+ft}, {4*STAGE}, v{GV+ft}")
    for i in range(4): a(f"v_mov_b32 v{ONES+i}, 0x3f803f80")
    ACC = 16
    XF = 64
    CS = 96
    WF = 128
    PT = 152
    PV = 1
    a(f"v_mov_b32 v{PV}, 1")
    def reads(n):
        st = n & 1; sl = n % NS
        def w(ft): return [(f"ds_read_b64_tr_b16 {vr(WF + 12*st + 4*ft + 2*hf, 2)}, v{GV + ft + (3 if sl >= 4 else 0)} offset:{(sl % 4) * STAGE + hf * 6144}", ("w", n, ft)) for hf in range(2)]
        x = [(f"ds_read_b128 {vr(XF + 16*st + 4*lt, 4)}, v{XA + (n & 3)} offset:{lt * 4096 + ((n >> 2) % 3) * 16384}", ("x", n, lt)) for lt in range(4)]
        return w(0) + x + w(1) + w(2)
    a.stamp(2)
    spin4(a, 8, 0, PT, 8, target=1, sleep=1)
    if GPRIO: a(f"s_setprio {GPRIO}")
    a.stamp(4)
    for t, tag in reads(0): a(t)
    spin4(a, 8, 0, PT, 8, target=2)
    a.lg = []
    slow = []
    for n in range(16):
        st = n & 1
        M = []
        for ft in range(3):
            w = vr(WF + 12*st + 4*ft, 4)
            for lt in range(4):
                d = vr(ACC + 16*ft + 4*lt, 4)
                M.append((f"v_mfma_f32_16x16x32_bf16 {d}, {w}, {vr(XF + 16*st + 4*lt, 4)}, {d if n else 0}", [("w", n, ft), ("x", n, lt)]))
            d = vr(CS + 4*ft, 4)
            M.append((f"v_mfma_f32_16x16x32_bf16 {d}, {w}, {vr(ONES, 4)}, {d if n else 0}", []))
        fill = [("ds",) + r for r in reads(n + 1)] if n + 1 < 16 else []
        chk = n + 2 < 16
        if n == 0: fill.insert(0, ("free", 0))
        for i, (m, need_) in enumerate(M):
            pos = [max(j for j, t in enumerate(a.lg) if t == tg) for tg in need_ if tg in a.lg]
            if pos: a.lg_wait(a.lg[max(pos)])
            a(m)
            if chk and i == 7: a.ds(f"ds_read_b128 {vr(PT,4)}, v8", ("f", n))
            for _ in range(RPG):
                if fill:
                    f = fill.pop(0)
                    if f[0] == "ds": a.ds(f[1], f[2])
                    else: a.ds(f"ds_write_b32 v7, v{PV} offset:48")
            if i == 2: a(f"v_mov_b32 v{PV}, {n + 2}")
            if chk:
                if i == 11: a.lg_wait(("f", n)); a(f"v_min3_u32 v{PT}, v{PT}, v{PT+1}, v{PT+2}")
                elif i == 12: a(f"v_min_u32 v{PT}, v{PT}, v{PT+3}")
                elif i == 13: a(f"v_readfirstlane_b32 s8, v{PT}")
                elif i == 14:
                    if n + 1 + NS < 16: a.ds(f"ds_write_b32 v7, v{PV} offset:48")
                    lab = a.label("GSLOW"); back = a.label("GBACK")
                    a(f"s_cmp_lt_u32 s8, {n + 3}", f"s_cbranch_scc1 {lab}", f"{back}:")
                    slow.append((lab, back, n + 3))
        assert not fill
        a.fstamp(n)
        if n == 7: a.stamp(5)
    a("s_waitcnt vmcnt(0)")
    a.stamp(6)
    spin4(a, 8, 16, 12, 8)
    SR = 152
    a(f"v_lshlrev_b32 v12, 3, v9", f"v_add_u32 v12, {LDS_STAT}, v12")
    for lt in range(4): a(f"ds_read_b64 {vr(SR + 2*lt, 2)}, v12 offset:{128*lt}")
    B1 = 128
    for ft in range(3):
        for h in range(2):
            a(f"v_lshlrev_b32 v{B1+4*ft+2*h}, 16, v{GV+6+2*ft+h}", f"v_and_b32 v{B1+4*ft+2*h+1}, 0xffff0000, v{GV+6+2*ft+h}")
    a("s_mul_i32 s8, s4, 172", "s_lshl_b32 s9, s6, 1", "s_add_u32 s8, s8, s9", "s_mul_i32 s9, s12, 3", "s_add_u32 s8, s8, s9", "s_lshl_b32 s8, s8, 10")
    a(f"s_add_u32 s8, s8, {HF}", f"s_add_u32 s9, s8, {86*1024}")
    a("s_lshr_b32 s10, 0x37, s5", "s_cmp_eq_u32 s12, 3", "s_cselect_b32 s10, s10, 0", "s_and_b32 s10, s10, 1")
    a("s_waitcnt lgkmcnt(0)")
    O = 64; TT = 80
    for ft in range(3):
        if ft == 1: a("s_cmp_eq_u32 s10, 1", "s_cbranch_scc1 K1_FIN")
        for pa in range(2):
            o = O + 4 * ((2*ft + pa) % 4)
            prs = [(ACC + 16*ft + 4*(2*pa + t) + 2*h, 4*ft + 2*h, o + 2*t + h, SR + 2*(2*pa + t), TT + 2*(2*t + h)) for t in range(2) for h in range(2)]
            for (c, b, d, s, t) in prs: a(f"v_pk_fma_f32 {vr(t,2)}, {vr(CS+b,2)}, {vr(s,2)}, {vr(B1+b,2)} op_sel:[0,1,0] op_sel_hi:[1,1,1]")
            for (c, b, d, s, t) in prs: a(f"v_pk_fma_f32 {vr(c,2)}, {vr(c,2)}, {vr(s,2)}, {vr(t,2)} op_sel:[0,0,0] op_sel_hi:[1,0,1]")
            for (c, b, d, s, t) in prs: a(f"v_mul_f32 v{c}, v{c}, |v{c}|", f"v_mul_f32 v{c+1}, v{c+1}, |v{c+1}|")
            for (c, b, d, s, t) in prs: a(f"v_cvt_pk_bf16_f32 v{d}, v{c}, v{c+1}")
            for (c, b, d, s, t) in prs: a(f"v_pk_max_i16 v{d}, v{d}, 0")
            a(f"v_permlane16_swap_b32 v{o}, v{o+2}", f"v_permlane16_swap_b32 v{o+1}, v{o+3}")
            a(f"buffer_store_dwordx4 {vr(o,4)}, v11, s[56:59], s{8+pa} offen offset:{ft*1024} {ST}")
    a.stamp(7)
    a("s_branch K1_FIN")
    for lab, back, tgt in slow:
        a(f"{lab}:")
        spin4(a, 8, 0, PT, 8, target=tgt)
        a(f"s_branch {back}")

    a("K1_L:")
    a.vm_reset()
    LV = 24
    a("s_lshl_b32 s13, s6, 6")
    a("s_mul_i32 s14, s12, 192")
    a("s_lshl_b32 s11, s4, 16", "s_lshl_b32 s10, s12, 14", "s_add_u32 s11, s11, s10", "s_lshl_b32 s10, s12, 12")
    for j in range(4):
        a(f"v_add_u32 v12, {4*j}, v10", "v_xor_b32 v13, v12, v9", "v_lshlrev_b32 v13, 4, v13", f"v_lshl_add_u32 v{16+j}, v12, 10, v13")
        a(f"v_lshl_add_u32 v{20+j}, v9, 8, v13", f"v_add_u32 v{20+j}, s10, v{20+j}")
    if ROT: a("s_add_u32 s80, s4, s5")
    else: a("s_mov_b32 s80, s5")
    for p in range(4):
        a(f"s_add_u32 s8, s80, {p}", "s_and_b32 s8, s8, 3", f"s_mul_i32 s{76+p}, s8, {4*88064}")
        if p == 3: a("s_lshl_b32 s81, s8, 1", "s_lshr_b32 s9, s5, 2", "s_add_u32 s81, s81, s9")
        a("s_lshl_b32 s8, s8, 8", f"s_add_u32 s{72+p}, s11, s8")
    a("s_waitcnt lgkmcnt(0)")
    a.stamp(1)
    srd(a, 44, 16, 2048 * 512 * 2)
    if LPRIO: a(f"s_setprio {LPRIO}")
    def xq(p):
        for j in range(4):
            a(f"s_add_u32 m0, s10, {16384*(p % 3) + 1024*j}")
            a.vmem(f"buffer_load_dwordx4 v{16+j}, s[44:47], s{72+p} offen lds", ("x", p))
    xq(0)
    srd(a, 48, 32, 512 * 1376 * 2)
    for i in range(3):
        a(f"s_add_u32 s8, s14, {64*i}", "v_add_u32 v28, s8, v0", "v_mul_u32_u24 v12, 2731, v28", "v_lshrrev_b32 v12, 16, v12")
        a("v_mul_u32_u24 v13, 24, v12", "v_sub_u32 v13, v28, v13")
        a("v_bfe_u32 v14, v12, 1, 2", "v_lshlrev_b32 v14, 1, v14", "v_xor_b32 v13, v13, v14")
        a("v_bfe_u32 v14, v12, 2, 2", "v_lshlrev_b32 v14, 3, v14", "v_lshrrev_b32 v15, 4, v12", "v_lshl_add_u32 v14, v15, 2, v14")
        a("v_and_b32 v15, 3, v12", "v_add_u32 v14, v14, v15")
        a("v_mul_u32_u24 v14, 2752, v14", f"v_lshl_add_u32 v14, v13, 4, v14", f"v_add_u32 v{LV+i}, s13, v14")
    a("s_mul_i32 s64, s12, 3072", f"s_add_u32 s64, s64, {LDS_RING}")
    def dma(n):
        a(f"s_add_u32 s66, s{76 + (n >> 2)}, {(n & 3) * 88064}")
        for i in range(3):
            a(f"s_add_u32 m0, s64, {(n % NS) * STAGE + i * 1024}")
            a.vmem(f"buffer_load_dwordx4 v{LV+i}, s[48:51], s66 offen lds", ("d", n))
    SX = 32; S1 = 96; S2 = 100
    lslow = []
    xat = {3: 1, 7: 2, 3 + NS: 3}
    xread = set()
    smf = []
    for m in range(16 + DIST):
        if m < 16:
            if m >= NS:
                a("s_waitcnt lgkmcnt(1)")
                min4(a, 28, 8)
                lab = a.label("LSLOW"); back = a.label("LBACK")
                a(f"s_cmp_lt_u32 s8, {m - NS + 1}", f"s_cbranch_scc1 {lab}", f"{back}:")
                lslow.append((lab, back, m - NS + 1))
            if m in xat: xq(xat[m])
            dma(m)
        if m == 0:
            a("s_barrier")
            srd(a, 56, 40, WS_BYTES)
            for i in range(4): a(f"v_mov_b32 v{ONES+i}, 0x3f803f80")
            a("s_mov_b32 s68, 0xaaaaaaaa", "s_mov_b32 s69, 0xaaaaaaaa", "s_mov_b32 s70, 0xcccccccc", "s_mov_b32 s71, 0xcccccccc")
            a(f"s_lshl_b32 s9, s12, 7", f"s_add_u32 s9, s9, {LDS_STAT}", "v_lshl_add_u32 v104, v9, 3, s9")
        if smf:
            a("s_waitcnt lgkmcnt(0)")
            a(*smf); smf = []
        if m >= DIST:
            a(f"v_mov_b32 v12, {m - DIST + 1}")
            a.vm_wait(("d", m - DIST))
            a("ds_write_b32 v7, v12") if not (NS <= m + 1 < 16) else None
            for p in range(4):
                issued = p == 0 or any(mm <= min(m, 15) and pp == p for mm, pp in xat.items())
                if p not in xread and issued and ("x", p) not in a.vm:
                    xread.add(p)
                    for j in range(4):
                        k = 4*p + j
                        a(f"ds_read_b128 {vr(SX+4*k,4)}, v{20+j} offset:{(p % 3) * 16384}")
                        smf.append(f"v_mfma_f32_16x16x32_bf16 {vr(S1,4)}, {vr(ONES,4)}, {vr(SX+4*k,4)}, {vr(S1,4) if k else 0}")
                        smf.append(f"v_mfma_f32_16x16x32_bf16 {vr(S2,4)}, {vr(SX+4*k,4)}, {vr(SX+4*k,4)}, {vr(S2,4) if k else 0}")
            if NS <= m + 1 < 16:
                a("ds_read_b128 v[28:31], v8 offset:48")
                a("ds_write_b32 v7, v12")
            a.fstamp(m - DIST)
        if m == DIST: a.stamp(3)
        if m == 7 + DIST: a.stamp(4)
        if len(xread) == 4 and not smf and "fin" not in xread:
            xread.add("fin")
            a(f"v_cndmask_b32 v{S2}, v{S2}, v{S2+1}, s[68:69]", f"v_cndmask_b32 v{S2+2}, v{S2+2}, v{S2+3}, s[68:69]", f"v_cndmask_b32 v{S2}, v{S2}, v{S2+2}, s[70:71]")
            a(f"v_mul_f32 v{S1}, {f32(1/512)}, v{S1}", f"v_mul_f32 v{S2}, {f32(1/512)}, v{S2}")
            a(f"v_fma_f32 v{S2}, -v{S1}, v{S1}, v{S2}", f"v_max_f32 v{S2}, 0, v{S2}")
            a(f"v_cvt_pk_bf16_f32 v{S1+1}, v{S1}, v{S2}")
            a(f"v_lshlrev_b32 v{S1}, 16, v{S1+1}", f"v_and_b32 v{S2}, 0xffff0000, v{S1+1}")
            a(f"v_add_f32 v{S2}, {f32(1e-5)}, v{S2}", f"v_cvt_pk_bf16_f32 v{S2}, v{S2}, v{S2}", f"v_lshlrev_b32 v{S2}, 16, v{S2}")
            a(f"v_sqrt_f32 v{S2}, v{S2}", f"v_cvt_pk_bf16_f32 v{S2}, v{S2}, v{S2}", f"v_lshlrev_b32 v{S2}, 16, v{S2}")
            a(f"v_rcp_f32 v{S2}, v{S2}", f"v_mul_f32 v{S2+1}, -v{S1}, v{S2}")
            a("s_mov_b32 exec_lo, 0x00f0000f", "s_mov_b32 exec_hi, 0xf0000f00")
            a(f"ds_write_b64 v104, {vr(S2,2)}")
            a("s_mov_b64 exec, -1")
            a("ds_write_b32 v7, v6 offset:16")
            assert m >= 15, m
    assert "fin" in xread
    a("s_setprio 0")
    a.stamp(6)
    spin4(a, 8, 16, 16, 9)
    UR = 24; SS = 32; UT = 64
    a("v_lshrrev_b32 v12, 2, v9", "v_lshl_add_u32 v12, v10, 3, v12")
    a("s_and_b32 s8, s81, 1", "s_lshl_b32 s8, s8, 3", "s_lshl_b32 s9, s12, 1", "s_add_u32 s8, s8, s9", "v_bfe_u32 v13, v9, 1, 1", "v_add_u32 v13, s8, v13")
    a("v_and_b32 v14, 1, v9", "v_lshlrev_b32 v14, 3, v14")
    for hf in range(2):
        if hf: a("v_add_u32 v12, 4, v12")
        a("v_and_b32 v15, 15, v12", "v_xor_b32 v15, v15, v13", "v_lshl_add_u32 v15, v15, 4, v14", "v_lshl_add_u32 v15, v12, 8, v15")
        for rr in range(2): a(f"ds_read_b64_tr_b16 {vr(UR + 4*rr + 2*hf, 2)}, v15 offset:{8192*rr}")
    a("v_lshlrev_b32 v12, 6, v10", f"v_add_u32 v12, {LDS_STAT}, v12")
    for rr in range(2):
        for i in range(4): a(f"ds_read_b128 {vr(SS+16*rr+4*i,4)}, v12 offset:{256*rr + 16*i}")
    a("s_lshl_b32 s8, s81, 18", "s_lshl_b32 s9, s12, 16", "s_add_u32 s8, s8, s9", "s_lshl_b32 s9, s4, 7", "s_add_u32 s8, s8, s9", f"s_add_u32 s8, s8, {UU}")
    a("v_lshlrev_b32 v13, 12, v9", "v_lshl_add_u32 v13, v10, 4, v13")
    a("s_waitcnt lgkmcnt(8)")
    for i in range(8): a(f"v_lshlrev_b32 v{UT+2*i}, 16, v{UR+i}", f"v_and_b32 v{UT+2*i+1}, 0xffff0000, v{UR+i}")
    a("s_waitcnt lgkmcnt(0)")
    for i in range(16): a(f"v_fma_f32 v{UT+i}, v{UT+i}, v{SS+2*i}, v{SS+2*i+1}")
    for i in range(8): a(f"v_cvt_pk_f16_f32 v{UR+i}, v{UT+2*i}, v{UT+2*i+1}")
    a(f"buffer_store_dwordx4 {vr(UR,4)}, v13, s[56:59], s8 offen {ST}")
    a(f"buffer_store_dwordx4 {vr(UR+4,4)}, v13, s[56:59], s8 offen offset:64 {ST}")
    a.stamp(7)
    a("s_branch K1_FIN")
    for lab, back, tgt in lslow:
        a(f"{lab}:")
        spin4(a, 8, 48, 28, 8, target=tgt, sleep=1)
        a(f"s_branch {back}")

    a("K1_A:")
    a.vm_reset()
    a("s_and_b32 s8, s2, 7", "s_lshl_b32 s8, s8, 5", "s_add_u32 s9, s8, s7")
    a("s_lshr_b32 s13, s12, 1", "s_and_b32 s14, s12, 1", "s_lshl_b32 s15, s9, 1", "s_add_u32 s15, s15, s13")
    a("s_lshl_b32 s10, s15, 8", "s_lshl_b32 s8, s14, 7", "s_add_u32 s8, s8, s10")
    a("v_lshl_add_u32 v12, v0, 1, s8", "v_lshl_add_u32 v13, v0, 2, s10")
    a("s_lshl_b32 s10, s9, 2")
    a("s_waitcnt lgkmcnt(0)")
    a.stamp(1)
    P = 152
    for i, p in enumerate((18, 20, 22, 24)):
        a.vmem(f"global_load_ushort v{P+i}, v12, s[{p}:{p+1}]", "p")
    a.vmem(f"global_load_dword v{P+4}, v13, s[22:23]", "p")
    a.vmem(f"global_load_dword v{P+5}, v13, s[24:25]", "p")
    a("s_load_dword s63, s[26:27], s10")
    if CODEPF:
        a("s_getpc_b64 s[78:79]", "K1_PC:")
        a("s_sub_u32 s78, s78, K1_PC-k1_kernel", "s_subb_u32 s79, s79, 0")
        a("s_lshl_b32 s8, s7, 2", "s_add_u32 s8, s8, s12", "s_lshl_b32 s8, s8, 8", "v_lshl_add_u32 v14, v0, 2, s8", "v_min_u32 v14, CODE_END-k1_kernel-4, v14")
        a.vmem("global_load_dword v158, v14, s[78:79]")
    a("s_barrier")
    srd(a, 56, 40, WS_BYTES)
    a(f"s_mul_i32 s64, s12, {A_STRIDE}", f"s_add_u32 s64, s64, {LDS_A}")
    if APRIO: a(f"s_setprio {APRIO}")
    a(f"v_lshlrev_b32 v12, 4, v10", f"v_add_u32 v{RA}, s64, v12", f"v_cvt_f32_u32 v{RA+1}, v9")
    for i in range(16): a(f"v_mov_b32 v{KA+i}, 0")
    a(f"s_mov_b32 s60, {f32(L2E_HI)}", f"s_mov_b32 s61, {f32(L2E_LO)}", f"s_mov_b32 s62, {f32(LN2)}")
    a("v_mul_u32_u24 v12, 384, v10", "v_lshl_add_u32 v12, v9, 2, v12", "v_add_u32 v12, s64, v12")
    a.stamp(2)
    a.vm_wait("p")
    a("s_waitcnt lgkmcnt(0)")
    a.stamp(3)
    a("s_lshl_b32 s10, s13, 4", "s_lshr_b32 s63, s63, s10", "s_lshl_b32 s63, s63, 16")
    T = 16
    a(f"v_and_b32 v{P+4}, 0x7fff7fff, v{P+4}", f"v_and_b32 v{P+5}, 0x7fff7fff, v{P+5}", f"v_pk_max_u16 v{P+4}, v{P+4}, v{P+5}")
    a(f"v_mov_b32 v{T}, s63")
    a(f"v_lshrrev_b32 v{P+5}, 16, v{P+4}", f"v_and_b32 v{P+4}, 0xffff, v{P+4}", f"v_max_u32 v{P+4}, v{P+4}, v{P+5}")
    for i in range(4): a(f"v_lshlrev_b32 v{P+i}, 16, v{P+i}")
    b1_, b2_ = Asm(), Asm()
    exp_bf16(b1_, T, T, T + 1, T + 2); exp_bf16(b2_, P, P, T + 3, T + 4)
    dpp = [f"v_max_u32_dpp v{P+4}, v{P+4}, v{P+4} {m} row_mask:0xf bank_mask:0xf" for m in ("quad_perm:[1,0,3,2]", "quad_perm:[2,3,0,1]", "row_half_mirror", "row_mirror")]
    for i in range(8):
        a(b1_.lines[i][1], b2_.lines[i][1])
        if i < 4: a(dpp[i])
    for i, ln in enumerate((0, 16, 32, 48)): a(f"v_readlane_b32 s{80+i}, v{P+4}, {ln}")
    RZ = 24
    a(f"v_mul_f32 v{T+1}, v{P}, v{T}", f"v_mul_f32 v{T+2}, v{P+1}, v{T}")
    a("s_max_u32 s80, s80, s81", "s_max_u32 s82, s82, s83", "s_max_u32 s80, s80, s82", "s_lshr_b32 s80, s80, 7")
    a("s_max_u32 s80, s80, 1", "s_min_u32 s80, s80, 250")
    a("s_sub_u32 s81, 253, s80", "s_lshl_b32 s81, s81, 23")
    a("s_add_u32 s82, s80, 2", "s_lshl_b32 s82, s82, 23")
    a(f"v_mul_f32 v{RZ}, {f32(-L2E)}, v{T+1}")
    a(f"v_mul_f32 v{RZ+1}, 0.15915494, v{T+2}")
    a(f"v_rndne_f32 v{T+1}, v{RZ+1}", f"v_sub_f32 v{RZ+1}, v{RZ+1}, v{T+1}")
    a(f"ds_write_b32 v12, v{RZ}", f"ds_write_b32 v12, v{RZ+1} offset:64")
    a(f"v_mul_f32 v{RZ+2}, s81, v{P+2}", f"v_mul_f32 v{RZ+3}, s81, v{P+3}")
    a(f"v_mul_f32 v{P+5}, s82, v{T}")
    a(f"v_cvt_pk_f16_f32 v{RZ+4}, v{RZ+2}, v{RZ+3}")
    U3 = 32
    K3 = ((1, 256.0), (2, 512.0), (3, 1536.0))
    for k, c in K3: t = U3 + 4*(k-1); a(f"v_mul_f32 v{t}, {f32(c)}, v{RZ}", f"v_mul_f32 v{t+1}, {f32(c)}, v{RZ+1}")
    for k, c in K3: t = U3 + 4*(k-1); a(f"v_exp_f32 v{t}, v{t}", f"v_fract_f32 v{t+1}, v{t+1}")
    for k, c in K3: t = U3 + 4*(k-1); a(f"v_cos_f32 v{t+2}, v{t+1}", f"v_sin_f32 v{t+3}, v{t+1}")
    for k, c in K3: t = U3 + 4*(k-1); a(f"v_mul_f32 v{t+2}, v{t}, v{t+2}", f"v_mul_f32 v{t+3}, v{t}, v{t+3}")
    for k, c in K3: t = U3 + 4*(k-1); a(f"v_mul_f32 v{t}, v{RZ+3}, v{t+3}", f"v_mul_f32 v{t+1}, v{RZ+3}, v{t+2}")
    for k, c in K3: t = U3 + 4*(k-1); a(f"v_fma_f32 v{t}, v{RZ+2}, v{t+2}, -v{t}", f"v_fmac_f32 v{t+1}, v{RZ+2}, v{t+3}")
    for k, c in K3: t = U3 + 4*(k-1); a(f"v_cvt_pk_f16_f32 v{RZ+4+k}, v{t}, v{t+1}")
    for i, r in enumerate((RZ + 4, RZ + 5, RZ + 6, RZ + 7)): a(f"ds_write_b32 v12, v{r} offset:{128 + 64*i}")
    a.stamp(4)
    kloop(a, 4, "K1_KLOOP")
    a.stamp(5)
    a("s_xor_b32 s77, s12, 1", f"s_mul_i32 s77, s77, {A_STRIDE}", f"s_add_u32 s77, s77, {LDS_A}")
    a("v_add_u32 v12, s64, v11", "v_add_u32 v13, s77, v11", "v_xor_b32 v14, 4, v7")
    a("s_cmp_eq_u32 s14, 0", "s_cbranch_scc1 K1_NOSWAP")
    for i in range(8): a(f"v_swap_b32 v{KA+i}, v{KA+8+i}")
    a("K1_NOSWAP:")
    for k in range(2): a(f"ds_write_b128 v12, {vr(KA+8+4*k,4)} offset:{1024*k}")
    a("ds_write_b32 v7, v6 offset:32")
    a("v_lshlrev_b32 v15, 3, v10", "v_lshl_add_u32 v15, v9, 5, v15", "v_add_u32 v15, s77, v15")
    spin1(a, 14, 32, 16, 10)
    for k in range(2): a(f"ds_read_b128 {vr(16+4*k,4)}, v13 offset:{1024*k}")
    a(f"s_mul_i32 s8, s15, {KROW}", "s_lshl_b32 s9, s14, 10", "s_add_u32 s8, s8, s9", f"s_add_u32 s8, s8, {KC}")
    a("v_cmp_eq_u32 vcc, 63, v0", "s_cmp_eq_u32 s14, 1", "s_cselect_b64 vcc, vcc, 0")
    a("s_waitcnt lgkmcnt(0)")
    for k in range(2):
        for e in range(4): a(f"v_add_f32 v{KA+4*k+e}, v{KA+4*k+e}, v{16+4*k+e}")
        a(f"v_cvt_pk_f16_f32 v{24+2*k}, v{KA+4*k}, v{KA+4*k+1}", f"v_cvt_pk_f16_f32 v{25+2*k}, v{KA+4*k+2}, v{KA+4*k+3}")
        if k: a(f"v_cndmask_b32 v27, v27, v{P+5}, vcc")
        a(f"ds_write_b64 v15, {vr(24+2*k,2)} offset:{512*k}")
    a("ds_read_b128 v[28:31], v13")
    a("s_lshl_b32 s9, s15, 2", "s_lshl_b32 s10, s14, 11", "s_add_u32 s9, s9, s10", f"s_add_u32 s9, s9, {FLG}", "v_mov_b32 v32, 0")
    a("s_waitcnt lgkmcnt(0)")
    a(f"buffer_store_dwordx4 v[28:31], v11, s[56:59], s8 offen {STA}")
    a("s_mov_b64 exec, 1")
    a(f"buffer_store_dword v32, v32, s[56:59], s9 offen {STA}")
    a("s_mov_b64 exec, -1")
    a.stamp(6)
    a("s_lshl_b32 s72, s2, 2", "s_add_u32 s72, s72, s12")
    if PFMODE:
        srd(a, 52, 36, 1376 * 512 * 2)
        a("s_mul_i32 s72, s72, 1376", "v_min_u32 v13, 352, v11")
        a("buffer_load_dwordx4 v[36:39], v11, s[52:55], s72 offen")
        a("buffer_load_dwordx4 v[40:43], v13, s[52:55], s72 offen offset:1024")
    a.stamp(7)
    a("K1_FIN:")
    a.stamp_flush(DBG)
    a("K1_END:", "s_endpgm")
    return N, 168, K1_LDS, 768
```

```python
from asmlib import *
from layout import *
from k1 import f32, L2E, L2E_HI, L2E_LO, LN2, srd, exp_bf16, min4, spin4, spin1, kloop, RA, KA

NS = 7; DIST = 3; STAGE = 12288
LDS_RING = 65536
LDS_A = LDS_RING + NS * STAGE
A_STRIDE = 2048
LDS_STAT = LDS_A + 4 * A_STRIDE
LDS_FLAG = LDS_STAT + 512
F_LDS = LDS_FLAG + 256
KCOPY = 4160; UOFF = 4 * KCOPY; CH_STRIDE = 4 * KCOPY + 4608
W2A = 0; W2AS = 4096
LDS_CONV = 49152
LDS_EX = 92160
W2B = LDS_EX + 16384; W2BS = 10240
GR = 11
PROW = 272; AOROW = 144
assert LDS_CONV + 2 * CH_STRIDE <= LDS_EX and W2B + 4 * W2BS <= LDS_A
FULL, STAT, PAIR1, FREE, PAIR2, UDONE, PAIR3, PAIR4, W2RDY, HST = range(0, 160, 16)
CNT_H, CNT_U, CNT_A, INIT_OK, H_OK, U_OK, A_OK, LATEF = range(160, 192, 4)
XAT = {1: 1, 2: 2, 3: 3}
FH = FLG; FU = FLG + 0x1000; FA = FLG + 0x1400
ST = "sc1"
GPRIO = 1; LPRIO = 2; CPRIO = 2
DH = 7
HACK = 1
TOUCH = 4
W2AT = {15: 0}
SPOLL = 1
UPRIO = 3
FASTSTAT = 1
LATE = 4
UPOLL = 12
HSLEEP = 6
SPIN_MAX = 20000

def gpoll(a, name, voff, soff, snap, t, sleep, first_sleep=True):
    a(f"s_mov_b32 s83, {SPIN_MAX}")
    if not first_sleep: a(f"s_branch {name}_F")
    a(f"{name}:", f"s_sleep {sleep}")
    if not first_sleep: a(f"{name}_F:")
    a(f"buffer_load_dword v{t}, v{voff}, s[56:59], {soff} offen sc1", "s_waitcnt vmcnt(0)")
    a(f"v_cmp_eq_u32 vcc, v{snap}, v{t}", "s_sub_u32 s83, s83, 1", f"s_cbranch_scc1 {name}_D", "s_nop 2", f"s_cbranch_vccnz {name}")
    a(f"{name}_D:")

def publish(a, name, cnt, soff, own, t):
    a("s_mov_b64 exec, 1")
    a(f"ds_add_rtn_u32 v{t}, v8, v6 offset:{cnt}", f"v_mov_b32 v{t+1}, 0", f"v_add_u32 v{own}, 1, v{own}", "s_waitcnt lgkmcnt(0)")
    a(f"v_readfirstlane_b32 s82, v{t}", "s_cmp_lg_u32 s82, 3", f"s_cbranch_scc1 {name}")
    a(f"buffer_store_dword v{own}, v{t+1}, s[56:59], {soff} offen sc1")
    a(f"{name}:", "s_mov_b64 exec, -1")

def wslot(n):
    k = n % GR
    return (64, (k >> 1) * 16384 + (k & 1) * 2048) if k < 6 else (65, (k - 6) * 2048)

def gen_f(a):
    N = NAME + "_kernel"
    a(f".globl {N}", ".p2align 8", f".type {N},@function", f"{N}:", "KF_START:")
    a("s_cmp_ge_u32 s2, 256", "s_cbranch_scc1 KF_END")
    a("s_load_dwordx16 s[16:31], s[0:1], 0", "s_load_dwordx8 s[32:39], s[0:1], 64", "s_load_dwordx2 s[40:41], s[0:1], 112", "s_load_dwordx4 s[60:63], s[0:1], 96")
    a.stamp_init(); a.stamp(0)
    a("v_lshrrev_b32 v1, 6, v0", "v_and_b32 v0, 63, v0", "v_readfirstlane_b32 s3, v1")
    a("v_and_b32 v9, 15, v0", "v_lshrrev_b32 v10, 4, v0", "v_lshlrev_b32 v11, 4, v0")
    a("v_mov_b32 v2, 0", "v_lshlrev_b32 v3, 2, v0", f"v_add_u32 v3, {LDS_FLAG}, v3", "ds_write_b32 v3, v2")
    a("s_and_b32 s8, s2, 7", "s_lshr_b32 s7, s2, 3")
    a("s_lshr_b32 s4, s8, 1", "s_lshl_b32 s4, s4, 3", "s_lshr_b32 s10, s7, 2", "s_add_u32 s4, s4, s10")
    a("s_and_b32 s5, s8, 1", "s_lshl_b32 s5, s5, 2", "s_and_b32 s10, s7, 3", "s_add_u32 s5, s5, s10")
    a("s_mul_i32 s6, s5, 5", "s_cmp_ge_u32 s5, 4", "s_addc_u32 s6, s6, 0", "s_cmp_ge_u32 s5, 7", "s_addc_u32 s6, s6, 0")
    a("s_lshl_b32 s67, s8, 2", "s_lshr_b32 s10, s7, 3", "s_add_u32 s67, s67, s10", "s_and_b32 s68, s7, 7")
    a("s_lshl_b32 s69, s8, 5", "s_add_u32 s69, s69, s7")
    a("s_add_u32 s80, s4, s5", "s_and_b32 s81, s80, 3", "s_lshl_b32 s81, s81, 1", "s_lshr_b32 s9, s5, 2", "s_add_u32 s81, s81, s9")
    a("s_and_b32 s12, s3, 3")
    a(f"v_mov_b32 v8, {LDS_FLAG}", "s_lshl_b32 s10, s12, 2", "v_add_u32 v7, s10, v8", "v_mov_b32 v6, 1")
    a("s_cmp_lt_u32 s3, 4", "s_cbranch_scc1 KF_A")
    a("s_cmp_lt_u32 s3, 8", "s_cbranch_scc1 KF_L")
    XR = 160; BR = 164
    def final_loads(half):
        a("s_lshl_b32 s8, s68, 7", f"s_add_u32 s8, s8, {64*half}", "v_lshlrev_b32 v2, 4, v10", "v_add_u32 v2, s8, v2")
        a("s_lshl_b32 s8, s67, 6", "s_lshl_b32 s9, s12, 4", "s_add_u32 s8, s8, s9", "v_add_u32 v3, s8, v9", "v_lshl_add_u32 v3, v3, 10, v2")
        a.vmem(f"global_load_dwordx4 {vr(XR,4)}, v3, s[16:17]", "xf")
        a.vmem(f"global_load_dwordx4 {vr(BR,4)}, v2, s[38:39]", "xf")
    def w2_addr(VW, t0, t1, t2):
        srd(a, 52, 36, 1376 * 512 * 2)
        a("s_mul_i32 s71, s12, 22", "s_cmp_eq_u32 s12, 3", "s_subb_u32 s71, s71, 0")
        a("s_lshl_b32 s70, s71, 14", "s_lshl_b32 s9, s68, 7", "s_add_u32 s70, s70, s9")
        a(f"s_mul_i32 s64, s12, {W2AS}", f"s_mul_i32 s65, s12, {W2BS}", f"s_add_u32 s65, s65, {W2B}")
        a(f"v_lshrrev_b32 v{t0}, 3, v0", f"v_and_b32 v{t1}, 7, v0", f"v_bfe_u32 v{t2}, v0, 4, 1", f"v_lshlrev_b32 v{t2}, 2, v{t2}", f"v_xor_b32 v{t1}, v{t1}, v{t2}")
        a(f"v_lshlrev_b32 v{t0}, 10, v{t0}", f"v_lshl_add_u32 v{VW}, v{t1}, 4, v{t0}", f"v_add_u32 v{VW+1}, 8192, v{VW}")

    a.vm_reset()
    XA = 2; ONES = 108; GV = 112
    a("s_lshl_b32 s13, s6, 6", "s_mul_i32 s14, s12, 96", "s_add_u32 s13, s13, s14")
    a("v_lshlrev_b32 v12, 3, v10", "v_add_u32 v12, s13, v12")
    a("s_waitcnt lgkmcnt(0)")
    a.stamp(1)
    for ft in range(3):
        a.vmem(f"global_load_dwordx2 {vr(GV+6+2*ft, 2)}, v12, s[34:35] offset:{32*ft}", "b1")
    srd(a, 56, 40, WS_BYTES)
    a("s_lshl_b32 s74, s4, 7", "s_lshl_b32 s9, s5, 2", "s_add_u32 s74, s74, s9", f"s_add_u32 s74, s74, {FH}")
    a("s_lshl_b32 s75, s67, 7", f"s_add_u32 s75, s75, {FH}", "v_and_b32 v158, 7, v0", "v_lshlrev_b32 v158, 2, v158", "v_mov_b32 v15, 0")
    a.vmem("buffer_load_dword v156, v15, s[56:59], s74 offen sc1")
    a.vmem("buffer_load_dword v157, v158, s[56:59], s75 offen sc1")
    a("s_barrier")
    for q in range(4):
        a(f"v_add_u32 v12, {4*q}, v10", "v_xor_b32 v12, v12, v9", "v_lshlrev_b32 v12, 4, v12", f"v_lshl_add_u32 v{XA+q}, v9, 8, v12")
    a("v_lshrrev_b32 v12, 2, v9", "v_lshl_add_u32 v12, v10, 2, v12", "v_bfe_u32 v13, v12, 1, 2", "v_mul_u32_u24 v12, 384, v12")
    a("v_and_b32 v14, 3, v9", "v_lshl_add_u32 v12, v14, 3, v12", f"v_add_u32 v12, {LDS_RING}, v12", "s_mul_i32 s8, s12, 3")
    for ft in range(3):
        a(f"s_add_u32 s9, s8, {ft}", "v_xor_b32 v14, s9, v13", f"v_lshl_add_u32 v{GV+ft}, v14, 5, v12")
    for ft in range(3): a(f"v_add_u32 v{GV+3+ft}, {4*STAGE}, v{GV+ft}")
    for i in range(4): a(f"v_mov_b32 v{ONES+i}, 0x3f803f80")
    ACC = 16; XF = 64; CS = 96; WF = 128; PT = 152; PV = 1
    a(f"v_mov_b32 v{PV}, 1")
    def reads(n):
        st = n & 1; sl = n % NS
        def w(ft): return [(f"ds_read_b64_tr_b16 {vr(WF + 12*st + 4*ft + 2*hf, 2)}, v{GV + ft + (3 if sl >= 4 else 0)} offset:{(sl % 4) * STAGE + hf * 6144}", ("w", n, ft)) for hf in range(2)]
        x = [(f"ds_read_b128 {vr(XF + 16*st + 4*lt, 4)}, v{XA + (n & 3)} offset:{lt * 4096 + (n >> 2) * 16384}", ("x", n, lt)) for lt in range(4)]
        return w(0) + x + w(1) + w(2)
    spin4(a, 8, FULL, PT, 8, target=1, sleep=1)
    if GPRIO: a(f"s_setprio {GPRIO}")
    a.stamp(2)
    for t, tag in reads(0): a(t)
    spin4(a, 8, FULL, PT, 8, target=2)
    a.lg = []
    slow = []
    for n in range(16):
        st = n & 1
        M = []
        for ft in range(3):
            w = vr(WF + 12*st + 4*ft, 4)
            for lt in range(4):
                d = vr(ACC + 16*ft + 4*lt, 4)
                M.append((f"v_mfma_f32_16x16x32_bf16 {d}, {w}, {vr(XF + 16*st + 4*lt, 4)}, {d if n else 0}", [("w", n, ft), ("x", n, lt)]))
            d = vr(CS + 4*ft, 4)
            M.append((f"v_mfma_f32_16x16x32_bf16 {d}, {w}, {vr(ONES, 4)}, {d if n else 0}", []))
        fill = [("ds",) + r for r in reads(n + 1)] if n + 1 < 16 else []
        chk = n + 2 < 16
        if n == 0: fill.insert(0, ("free", 0))
        for i, (m, need_) in enumerate(M):
            pos = [max(j for j, t in enumerate(a.lg) if t == tg) for tg in need_ if tg in a.lg]
            if pos: a.lg_wait(a.lg[max(pos)])
            a(m)
            if chk and i == 7: a.ds(f"ds_read_b128 {vr(PT,4)}, v8 offset:{FULL}", ("f", n))
            if fill:
                f = fill.pop(0)
                if f[0] == "ds": a.ds(f[1], f[2])
                else: a.ds(f"ds_write_b32 v7, v{PV} offset:{FREE}")
            if i == 2: a(f"v_mov_b32 v{PV}, {n + 2}")
            if i == 11 and (n + 1 + NS < 16 or n in (10, 14)):
                a.ds(f"ds_write_b32 v7, v{PV} offset:{FREE}")
            if chk:
                if i == 11: a.lg_wait(("f", n)); a(f"v_min3_u32 v{PT}, v{PT}, v{PT+1}, v{PT+2}")
                elif i == 12: a(f"v_min_u32 v{PT}, v{PT}, v{PT+3}")
                elif i == 13: a(f"v_readfirstlane_b32 s8, v{PT}")
                elif i == 14:
                    lab = a.label("GSLOW"); back = a.label("GBACK")
                    a(f"s_cmp_lt_u32 s8, {n + 3}", f"s_cbranch_scc1 {lab}", f"{back}:")
                    slow.append((lab, back, n + 3))
        assert not fill
    a("s_waitcnt vmcnt(0)")
    a.stamp(3)
    spin4(a, 8, STAT, 12, 8)
    SR = 140
    a(f"v_lshlrev_b32 v12, 3, v9", f"v_add_u32 v12, {LDS_STAT}, v12")
    for lt in range(4): a(f"ds_read_b64 {vr(SR + 2*lt, 2)}, v12 offset:{128*lt}")
    B1 = 128
    for ft in range(3):
        for h in range(2):
            a(f"v_lshlrev_b32 v{B1+4*ft+2*h}, 16, v{GV+6+2*ft+h}", f"v_and_b32 v{B1+4*ft+2*h+1}, 0xffff0000, v{GV+6+2*ft+h}")
    a("s_mul_i32 s8, s4, 172", "s_lshl_b32 s9, s6, 1", "s_add_u32 s8, s8, s9", "s_mul_i32 s9, s12, 3", "s_add_u32 s8, s8, s9", "s_lshl_b32 s8, s8, 10")
    a(f"s_add_u32 s8, s8, {HF}", f"s_add_u32 s9, s8, {86*1024}")
    a("s_lshr_b32 s10, 0x37, s5", "s_cmp_eq_u32 s12, 3", "s_cselect_b32 s10, s10, 0", "s_and_b32 s10, s10, 1")
    a("s_setprio 3")
    a("s_waitcnt lgkmcnt(0)")
    O = 64; TT = 80
    for ft in range(3):
        if ft == 1: a("s_cmp_eq_u32 s10, 1", "s_cbranch_scc1 KF_GEPI")
        for pa in range(2):
            o = O + 4 * ((2*ft + pa) % 4)
            prs = [(ACC + 16*ft + 4*(2*pa + t) + 2*h, 4*ft + 2*h, o + 2*t + h, SR + 2*(2*pa + t), TT + 2*(2*t + h)) for t in range(2) for h in range(2)]
            for (c, b, d, s, t) in prs:
                for e in range(2): a(f"v_fma_f32 v{t+e}, v{CS+b+e}, v{s+1}, v{B1+b+e}")
            for (c, b, d, s, t) in prs:
                for e in range(2): a(f"v_fmac_f32 v{t+e}, v{c+e}, v{s}")
            for (c, b, d, s, t) in prs: a(f"v_mul_f32 v{c}, v{t}, |v{t}|", f"v_mul_f32 v{c+1}, v{t+1}, |v{t+1}|")
            for (c, b, d, s, t) in prs: a(f"v_cvt_pk_bf16_f32 v{d}, v{c}, v{c+1}")
            for (c, b, d, s, t) in prs: a(f"v_pk_max_i16 v{d}, v{d}, 0")
            a(f"v_permlane16_swap_b32 v{o}, v{o+2}", f"v_permlane16_swap_b32 v{o+1}, v{o+3}")
            a(f"buffer_store_dwordx4 {vr(o,4)}, v11, s[56:59], s{8+pa} offen offset:{ft*1024} {ST}")
    a("KF_GEPI:")
    if not HACK: a(f"ds_write_b32 v7, v6 offset:{HST}")
    a.stamp(4)
    PF = 80; W2F_ = 144; VW = 12; VT = 14; VP = 1; VTB = 140
    pass
    w2_addr(VW, 4, 5, 1)
    a(f"s_add_u32 s70, s70, {GR * 16384}")
    a("s_mul_i32 s9, s67, 172", "s_add_u32 s9, s9, s71", "s_lshl_b32 s72, s9, 10", f"s_add_u32 s72, s72, {HF}", f"s_add_u32 s73, s72, {86*1024}")
    a("v_lshrrev_b32 v4, 1, v10", "v_lshrrev_b32 v5, 2, v9", "v_lshl_add_u32 v4, v4, 3, v5", "v_lshlrev_b32 v4, 7, v4")
    a("v_and_b32 v5, 1, v10", "v_lshl_add_u32 v4, v5, 5, v4", "v_and_b32 v5, 3, v9", "v_lshl_add_u32 v4, v5, 3, v4")
    a("v_bfe_u32 v5, v9, 3, 1", "v_lshl_add_u32 v4, v5, 6, v4", f"v_add_u32 v{VT}, s64, v4", f"v_add_u32 v{VTB}, s65, v4", "v_xor_b32 v4, 64, v4", f"v_add_u32 v{VT+1}, s64, v4", f"v_add_u32 v{VTB+1}, s65, v4")
    a("s_waitcnt vmcnt(0)")
    publish(a, "KF_PUBH", CNT_H, "s74", 156, 4)
    if HACK: a(f"ds_write_b32 v7, v6 offset:{HST}")
    a.stamp(5)
    a(f"s_setprio {GPRIO}")
    a.vm_reset()
    final_loads(1)
    a("s_cmp_lg_u32 s12, 0", "s_cbranch_scc1 KF_GWAIT")
    gpoll(a, "KF_POLLH", 158, "s75", 157, 4, HSLEEP)
    a(f"ds_write_b32 v8, v6 offset:{H_OK}")
    a("KF_GWAIT:")
    spin1(a, 8, H_OK, 4, 8, sleep=1)
    a.stamp(6)
    G2 = 16
    PA = PF + 8 * (15 % DH)
    assert all((n % DH) != (15 % DH) for n in range(16, 22))
    def hld(n):
        b = PF + 8 * (n % DH)
        L = [([], f"buffer_load_dwordx4 {vr(b + 4*i, 4)}, v11, s[56:59], s{72+i} offen offset:{(n & 3) * 1024} sc1", [], ("h", n)) for i in range(2)]
        if n & 3 == 3: L[1] = (L[1][0], L[1][1], ["s_add_u32 s72, s72, 4096", "s_add_u32 s73, s73, 4096"], L[1][3])
        return L
    def wld(n):
        sb, off = wslot(n)
        return [([f"s_add_u32 m0, s{sb}, {off}"], f"buffer_load_dwordx4 v{VW}, s[52:55], s70 offen lds", [], ("w", n)),
                ([f"s_add_u32 m0, s{sb}, {off + 1024}"], f"buffer_load_dwordx4 v{VW+1}, s[52:55], s70 offen lds", ["s_add_u32 s70, s70, 16384"], ("w", n))]
    def emit(x):
        pre, ins, post, tag = x
        a(*pre); a.vmem(ins, tag); a(*post)
    def trs(n):
        for dt in range(2):
            for hf in range(2):
                sb, off = wslot(n)
                a(f"ds_read_b64_tr_b16 {vr(W2F_ + 8*(n & 1) + 4*dt + 2*hf, 2)}, v{(VT if sb == 64 else VTB) + dt} offset:{off + 512*hf}")
    def vwait(*tags):
        idx = [i for i, t in enumerate(a.vm) if t in tags]
        if idx: a.vm_wait(a.vm[max(idx)])
    for n in range(DH):
        for x in hld(n): emit(x)
    spin1(a, 7, W2RDY, 4, 8)
    trs(0)
    for n in range(22):
        b = PF + 8 * (n % DH)
        vwait(("h", n), ("w", n + 1))
        a("s_waitcnt lgkmcnt(0)")
        if n + 1 < 22: trs(n + 1)
        if n == LATE: a(f"ds_write_b32 v8, v6 offset:{LATEF}")
        if n == 17:
            a("v_and_b32 v4, 31, v0", "v_lshrrev_b32 v5, 5, v0", "v_and_b32 v1, 7, v0", "v_xor_b32 v5, v5, v1", "v_lshlrev_b32 v5, 4, v5", "v_lshl_add_u32 v4, v4, 7, v5")
            for q in range(4): a(f"v_xor_b32 v5, {32*q}, v4", f"v_add_u32 v{PA+q}, s64, v5", f"v_add_u32 v{PA+4+q}, s65, v5")
        if n == 21: a("s_cmp_ge_u32 s12, 2", "s_cbranch_scc1 KF_GDONE")
        L = []
        if n >= 1 and n - 1 + DH < 22: L += hld(n - 1 + DH)
        if n + GR < 22: L += wld(n + GR)
        for dt in range(2):
            for lt in range(2):
                d = vr(G2 + 32*dt + 16*lt, 16)
                a(f"v_mfma_f32_32x32x16_bf16 {d}, {vr(W2F_ + 8*(n & 1) + 4*dt, 4)}, {vr(b + 4*lt, 4)}, {d if n else 0}")
                if L: emit(L.pop(0))
    a("KF_GDONE:")
    a("s_nop 7", "s_nop 3")
    a.stamp(7)
    for q in range(4):
        for lt in range(2):
            for dt in range(2):
                a(f"ds_write_b128 v{PA + 4*lt + q}, {vr(G2 + 32*dt + 16*lt + 4*q, 4)} offset:{dt * (4096 if lt else 16384)}")
    a("s_mov_b32 s13, 1")
    a("KF_FINAL:")
    a("s_and_b32 s8, s12, 1", "s_lshl_b32 s8, s8, 11", "v_lshlrev_b32 v98, 1, v10", "v_and_b32 v99, 7, v9", "v_xor_b32 v98, v98, v99", "v_lshlrev_b32 v98, 4, v98", "v_lshl_add_u32 v98, v9, 7, v98")
    a("s_lshl_b32 s9, s13, 14", "s_lshl_b32 s10, s13, 12", f"s_add_u32 s10, s10, {W2B}")
    a("s_cmp_ge_u32 s12, 2", "s_cselect_b32 s9, s10, s9", f"s_mov_b32 s10, {W2AS}", f"s_cselect_b32 s10, {W2BS}, s10", "s_add_u32 s8, s8, s9")
    a("v_add_u32 v100, s8, v98", "v_xor_b32 v98, 16, v98", "v_add_u32 v104, s8, v98")
    for w in range(1, 4): a(f"v_add_u32 v{100+w}, s10, v{99+w}", f"v_add_u32 v{104+w}, s10, v{103+w}")
    a("v_lshrrev_b32 v97, 2, v9", "v_and_b32 v98, 1, v10", "v_lshl_add_u32 v97, v98, 3, v97", f"v_mul_u32_u24 v97, {AOROW}, v97", "v_and_b32 v98, 3, v9", "v_lshl_add_u32 v97, v98, 3, v97")
    a("v_lshrrev_b32 v98, 1, v10", "v_xor_b32 v98, 1, v98", "v_lshl_add_u32 v97, v98, 12, v97")
    a("s_lshl_b32 s8, s13, 13", "s_lshl_b32 s9, s12, 5", "s_add_u32 s8, s8, s9", f"s_add_u32 s8, s8, {LDS_EX}", "v_add_u32 v97, s8, v97")
    XU = 80; BU = 88
    a("s_waitcnt vmcnt(0)")
    for i in range(4):
        a(f"v_lshlrev_b32 v{XU+2*i}, 16, v{XR+i}", f"v_and_b32 v{XU+2*i+1}, 0xffff0000, v{XR+i}")
        a(f"v_lshlrev_b32 v{BU+2*i}, 16, v{BR+i}", f"v_and_b32 v{BU+2*i+1}, 0xffff0000, v{BR+i}")
    for i in range(8): a(f"v_add_f32 v{XU+i}, v{XU+i}, v{BU+i}")
    a("s_waitcnt lgkmcnt(0)", "s_barrier")
    Q = 24
    a("ds_read_b64_tr_b16 v[20:21], v97", f"ds_read_b64_tr_b16 v[22:23], v97 offset:{4*AOROW}")
    for w in range(4):
        for h in range(2): a(f"ds_read_b128 {vr(Q + 8*w + 4*h, 4)}, v{100+4*h+w}")
    a("s_waitcnt lgkmcnt(8)")
    for i in range(4): a(f"v_lshlrev_b32 v{BU+2*i}, 16, v{20+i}", f"v_and_b32 v{BU+2*i+1}, 0xffff0000, v{20+i}")
    for i in range(4): a(f"v_pk_add_f32 {vr(XU+2*i,2)}, {vr(XU+2*i,2)}, {vr(BU+2*i,2)}")
    for w in range(4):
        a(f"s_waitcnt lgkmcnt({6 - 2*w})")
        for i in range(4): a(f"v_pk_add_f32 {vr(XU+2*i,2)}, {vr(XU+2*i,2)}, {vr(Q+8*w+2*i,2)}")
    for i in range(4): a(f"v_cvt_pk_bf16_f32 v{20+i}, v{XU+2*i}, v{XU+2*i+1}")
    a("global_store_dwordx4 v3, v[20:23], s[60:61]")
    a("s_branch KF_FIN")
    for lab, back, tgt in slow:
        a(f"{lab}:")
        spin4(a, 8, FULL, PT, 8, target=tgt)
        a(f"s_branch {back}")

    a("KF_L:")
    a.vm_reset()
    LV = 24
    a("s_lshl_b32 s13, s6, 6", "s_mul_i32 s14, s12, 192")
    a("s_lshl_b32 s11, s4, 16", "s_lshl_b32 s10, s12, 14", "s_add_u32 s11, s11, s10", "s_lshl_b32 s10, s12, 12")
    for j in range(4):
        a(f"v_add_u32 v12, {4*j}, v10", "v_xor_b32 v13, v12, v9", "v_lshlrev_b32 v13, 4, v13", f"v_lshl_add_u32 v{16+j}, v12, 10, v13")
        a(f"v_lshl_add_u32 v{20+j}, v9, 8, v13", f"v_add_u32 v{20+j}, s10, v{20+j}")
    for p in range(4):
        a(f"s_add_u32 s8, s80, {p}", "s_and_b32 s8, s8, 3", f"s_mul_i32 s{76+p}, s8, {4*88064}", "s_lshl_b32 s8, s8, 8", f"s_add_u32 s{72+p}, s11, s8")
    a("s_waitcnt lgkmcnt(0)")
    a.stamp(1)
    srd(a, 44, 16, 2048 * 512 * 2)
    if LPRIO: a(f"s_setprio {LPRIO}")
    def xq(p):
        for j in range(4):
            a(f"s_add_u32 m0, s10, {16384*p + 1024*j}")
            a.vmem(f"buffer_load_dwordx4 v{16+j}, s[44:47], s{72+p} offen lds", ("x", p))
    xq(0)
    srd(a, 48, 32, 512 * 1376 * 2)
    for i in range(3):
        a(f"s_add_u32 s8, s14, {64*i}", "v_add_u32 v28, s8, v0", "v_mul_u32_u24 v12, 2731, v28", "v_lshrrev_b32 v12, 16, v12")
        a("v_mul_u32_u24 v13, 24, v12", "v_sub_u32 v13, v28, v13")
        a("v_bfe_u32 v14, v12, 1, 2", "v_lshlrev_b32 v14, 1, v14", "v_xor_b32 v13, v13, v14")
        a("v_bfe_u32 v14, v12, 2, 2", "v_lshlrev_b32 v14, 3, v14", "v_lshrrev_b32 v15, 4, v12", "v_lshl_add_u32 v14, v15, 2, v14")
        a("v_and_b32 v15, 3, v12", "v_add_u32 v14, v14, v15")
        a("v_mul_u32_u24 v14, 2752, v14", f"v_lshl_add_u32 v14, v13, 4, v14", f"v_add_u32 v{LV+i}, s13, v14")
    a("s_mul_i32 s22, s12, 3072", f"s_add_u32 s22, s22, {LDS_RING}")
    def dma(n):
        a(f"s_add_u32 s66, s{76 + (n >> 2)}, {(n & 3) * 88064}")
        for i in range(3):
            a(f"s_add_u32 m0, s22, {(n % NS) * STAGE + i * 1024}")
            a.vmem(f"buffer_load_dwordx4 v{LV+i}, s[48:51], s66 offen lds", ("d", n))
    SX = 32; S1 = 96; S2 = 100
    lslow = []
    xat = XAT
    xread = set(); smf = []
    for m in range(16 + DIST):
        if m < 16:
            if m >= NS:
                a(f"s_waitcnt lgkmcnt({after})")
                min4(a, 28, 8)
                lab = a.label("LSLOW"); back = a.label("LBACK")
                a(f"s_cmp_lt_u32 s8, {m - NS + 1}", f"s_cbranch_scc1 {lab}", f"{back}:")
                lslow.append((lab, back, m - NS + 1))
            if m in xat: xq(xat[m])
            dma(m)
        if m == 0:
            a("s_barrier")
            srd(a, 56, 40, WS_BYTES)
            for i in range(4): a(f"v_mov_b32 v{ONES+i}, 0x3f803f80")
            a("s_mov_b32 s18, 0xaaaaaaaa", "s_mov_b32 s19, 0xaaaaaaaa", "s_mov_b32 s20, 0xcccccccc", "s_mov_b32 s21, 0xcccccccc")
            a(f"s_lshl_b32 s9, s12, 7", f"s_add_u32 s9, s9, {LDS_STAT}", "v_lshl_add_u32 v104, v9, 3, s9")
        if m == TOUCH:
            w2_addr(112, 12, 14, 15)
            a("s_lshl_b32 s8, s2, 2", "s_add_u32 s8, s8, s12", "s_mul_i32 s8, s8, 1376", "v_min_u32 v12, 352, v11")
            a.vmem("buffer_load_dwordx4 v[160:163], v11, s[52:55], s8 offen")
            a.vmem("buffer_load_dwordx4 v[164:167], v12, s[52:55], s8 offen offset:1024")
        if m in W2AT:
            if W2AT[m] == 0: spin4(a, 8, UDONE, 116, 8, sleep=1)
            if W2AT[m] == 4: spin4(a, 8, FREE, 116, 8, target=12, sleep=1)
            for n in (W2AT[m],):
                sb, off = wslot(n)
                for i in range(2):
                    a(f"s_add_u32 m0, s{sb}, {off + 1024*i}")
                    a.vmem(f"buffer_load_dwordx4 v{112+i}, s[52:55], s70 offen lds")
                a("s_add_u32 s70, s70, 16384")
        if smf:
            a("s_waitcnt lgkmcnt(0)")
            a(*smf); smf = []
        if m >= DIST:
            a(f"v_mov_b32 v12, {m - DIST + 1}")
            a.vm_wait(("d", m - DIST))
            if not (NS <= m + 1 < 16): a(f"ds_write_b32 v7, v12 offset:{FULL}")
            for p in range(4):
                issued = p == 0 or any(mm <= min(m, 15) and pp == p for mm, pp in xat.items())
                if p not in xread and issued and ("x", p) not in a.vm:
                    xread.add(p)
                    for j in range(4):
                        k = 4*p + j
                        a(f"ds_read_b128 {vr(SX+4*k,4)}, v{20+j} offset:{p * 16384}")
                        smf.append(f"v_mfma_f32_16x16x32_bf16 {vr(S1,4)}, {vr(ONES,4)}, {vr(SX+4*k,4)}, {vr(S1,4) if k else 0}")
                        smf.append(f"v_mfma_f32_16x16x32_bf16 {vr(S2,4)}, {vr(SX+4*k,4)}, {vr(SX+4*k,4)}, {vr(S2,4) if k else 0}")
            if NS <= m + 1 < 16:
                a(f"ds_read_b128 v[28:31], v8 offset:{FREE}")
                a(f"ds_write_b32 v7, v12 offset:{FULL}")
                after = 1
        if m == DIST: a.stamp(2)
        if len(xread) == 4 and smf and FASTSTAT:
            a("s_waitcnt lgkmcnt(0)")
            a(*smf); smf = []
        if len(xread) == 4 and not smf and "fin" not in xread:
            xread.add("fin")
            a(f"v_cndmask_b32 v{S2}, v{S2}, v{S2+1}, s[18:19]", f"v_cndmask_b32 v{S2+2}, v{S2+2}, v{S2+3}, s[18:19]", f"v_cndmask_b32 v{S2}, v{S2}, v{S2+2}, s[20:21]")
            a(f"v_mul_f32 v{S1}, {f32(1/512)}, v{S1}", f"v_mul_f32 v{S2}, {f32(1/512)}, v{S2}")
            a(f"v_fma_f32 v{S2}, -v{S1}, v{S1}, v{S2}", f"v_max_f32 v{S2}, 0, v{S2}")
            a(f"v_cvt_pk_bf16_f32 v{S1+1}, v{S1}, v{S2}")
            a(f"v_lshlrev_b32 v{S1}, 16, v{S1+1}", f"v_and_b32 v{S2}, 0xffff0000, v{S1+1}")
            a(f"v_add_f32 v{S2}, {f32(1e-5)}, v{S2}", f"v_cvt_pk_bf16_f32 v{S2}, v{S2}, v{S2}", f"v_lshlrev_b32 v{S2}, 16, v{S2}")
            a(f"v_sqrt_f32 v{S2}, v{S2}", f"v_cvt_pk_bf16_f32 v{S2}, v{S2}, v{S2}", f"v_lshlrev_b32 v{S2}, 16, v{S2}")
            a(f"v_rcp_f32 v{S2}, v{S2}", f"v_mul_f32 v{S2+1}, -v{S1}, v{S2}")
            a("s_mov_b32 exec_lo, 0x00f0000f", "s_mov_b32 exec_hi, 0xf0000f00")
            a(f"ds_write_b64 v104, {vr(S2,2)}")
            a("s_mov_b64 exec, -1")
            a(f"ds_write_b32 v7, v6 offset:{STAT}")
            after = 3
            a.stamp(3)
    assert "fin" in xread
    a.stamp(4)
    a("s_setprio 0")
    a.stamp(5)
    for n in range(max(W2AT.values()) + 1, GR):
        if n == 4: spin4(a, 8, FREE, 20, 8, target=12, sleep=1)
        if n == 6:
            spin4(a, 8, HST, 20, 8, sleep=1)
            a.stamp(6)
        sb, off = wslot(n)
        for i in range(2):
            a(f"s_add_u32 m0, s{sb}, {off + 1024*i}", f"buffer_load_dwordx4 v{112+i}, s[52:55], s70 offen lds")
        a("s_add_u32 s70, s70, 16384")
    a("s_waitcnt vmcnt(0)")
    a(f"ds_write_b32 v7, v6 offset:{W2RDY}")
    a.stamp(7)
    a("s_branch KF_FIN")
    for lab, back, tgt in lslow:
        a(f"{lab}:")
        spin4(a, 8, FREE, 28, 8, target=tgt, sleep=1)
        a(f"s_branch {back}")

    a("KF_A:")
    a.vm_reset()
    a("s_lshr_b32 s13, s12, 1", "s_and_b32 s14, s12, 1", "s_lshl_b32 s15, s69, 1", "s_add_u32 s15, s15, s13")
    a("s_lshl_b32 s10, s15, 8", "s_lshl_b32 s8, s14, 7", "s_add_u32 s8, s8, s10")
    a("v_lshl_add_u32 v12, v0, 1, s8", "v_lshl_add_u32 v13, v0, 2, s10")
    a("s_lshl_b32 s10, s69, 2")
    a("s_waitcnt lgkmcnt(0)")
    a.stamp(1)
    P = 152
    for i, p in enumerate((18, 20, 22, 24)):
        a.vmem(f"global_load_ushort v{P+i}, v12, s[{p}:{p+1}]", "p")
    a.vmem(f"global_load_dword v{P+4}, v13, s[22:23]", "p")
    a.vmem(f"global_load_dword v{P+5}, v13, s[24:25]", "p")
    a("s_load_dword s66, s[26:27], s10", "s_load_dword s79, s[28:29], s10")
    a("s_getpc_b64 s[44:45]", "KF_PC:")
    a("s_sub_u32 s44, s44, KF_PC-KF_START", "s_subb_u32 s45, s45, 0")
    a("s_lshl_b32 s8, s7, 2", "s_add_u32 s8, s8, s12", "s_lshl_b32 s8, s8, 8", "v_lshl_add_u32 v14, v0, 2, s8", "v_min_u32 v14, CODE_END-KF_START-4, v14")
    a.vmem("global_load_dword v158, v14, s[44:45]")
    srd(a, 56, 40, WS_BYTES)
    a("s_lshl_b32 s71, s81, 7", "s_lshl_b32 s9, s4, 2", "s_add_u32 s71, s71, s9", f"s_add_u32 s71, s71, {FU}")
    a("s_lshl_b32 s78, s69, 2", f"s_add_u32 s78, s78, {FA}")
    a("s_lshr_b32 s52, s69, 5", "s_lshl_b32 s52, s52, 7", f"s_add_u32 s52, s52, {FU}", "s_lshl_b32 s53, s68, 7", f"s_add_u32 s53, s53, {FA}")
    a("v_and_b32 v4, 31, v0", "v_lshlrev_b32 v4, 2, v4", "v_mov_b32 v15, 0")
    a.vmem("buffer_load_dword v159, v15, s[56:59], s71 offen sc1")
    a.vmem("buffer_load_dword v134, v15, s[56:59], s78 offen sc1")
    a.vmem("buffer_load_dword v135, v4, s[56:59], s52 offen sc1")
    a.vmem("buffer_load_dword v1, v4, s[56:59], s53 offen sc1")
    a("s_barrier")
    a(f"s_mul_i32 s64, s12, {A_STRIDE}", f"s_add_u32 s64, s64, {LDS_A}")
    a(f"v_lshlrev_b32 v12, 4, v10", f"v_add_u32 v{RA}, s64, v12", f"v_cvt_f32_u32 v{RA+1}, v9")
    for i in range(16): a(f"v_mov_b32 v{KA+i}, 0")
    a("v_mul_u32_u24 v12, 384, v10", "v_lshl_add_u32 v12, v9, 2, v12", "v_add_u32 v12, s64, v12")
    E = 112
    a(f"s_lshl_b32 s77, s13, 12", f"s_add_u32 s77, s77, {LDS_A + 1024}")
    a("s_lshl_b32 s8, s14, 9", "v_lshl_add_u32 v88, v0, 3, s8", "v_cvt_f32_u32 v88, v88")
    offs = list(range(-3, 8)) + [1024 + e for e in (-3, 0, 4, 5)] + [0]
    for k in range(0, 16, 2):
        a(f"v_add_f32 v89, {f32(offs[k])}, v88", f"v_add_f32 v90, {f32(offs[k+1])}, v88")
        a("v_cvt_pk_bf16_f32 v89, v89, v90")
        a("v_and_b32 v90, 0xffff0000, v89", "v_lshlrev_b32 v89, 16, v89", "v_cvt_u32_f32 v89, v89", "v_cvt_u32_f32 v90, v90")
        for r, kk in ((89, k), (90, k + 1)):
            if kk == 15: continue
            a(f"v_lshrrev_b32 v91, 2, v{r}", "v_add_u32 v91, 384, v91")
            if kk < 11: a(f"v_min_u32 v91, v{r}, v91")
            a("v_xor_b32 v91, 0x200, v91", f"v_lshl_add_u32 v{E+kk}, v91, 1, s77")
    a.vm_wait("p")
    a("s_waitcnt lgkmcnt(0)")
    a.stamp(2)
    a("s_mov_b32 s46, s60", "s_mov_b32 s47, s61")
    a(f"s_mov_b32 s60, {f32(L2E_HI)}", f"s_mov_b32 s61, {f32(L2E_LO)}", f"s_mov_b32 s62, {f32(LN2)}")
    a("s_lshl_b32 s10, s13, 4", "s_lshr_b32 s66, s66, s10", "s_lshl_b32 s66, s66, 16", "s_lshr_b32 s79, s79, s10", "s_lshl_b32 s79, s79, 16")
    T = 16
    a(f"v_and_b32 v{P+4}, 0x7fff7fff, v{P+4}", f"v_and_b32 v{P+5}, 0x7fff7fff, v{P+5}", f"v_pk_max_u16 v{P+4}, v{P+4}, v{P+5}")
    a(f"v_mov_b32 v{T}, s66")
    a(f"v_lshrrev_b32 v{P+5}, 16, v{P+4}", f"v_and_b32 v{P+4}, 0xffff, v{P+4}", f"v_max_u32 v{P+4}, v{P+4}, v{P+5}")
    for i in range(4): a(f"v_lshlrev_b32 v{P+i}, 16, v{P+i}")
    b1_, b2_ = Asm(), Asm()
    exp_bf16(b1_, T, T, T + 1, T + 2); exp_bf16(b2_, P, P, T + 3, T + 4)
    dpp = [f"v_max_u32_dpp v{P+4}, v{P+4}, v{P+4} {m} row_mask:0xf bank_mask:0xf" for m in ("quad_perm:[1,0,3,2]", "quad_perm:[2,3,0,1]", "row_half_mirror", "row_mirror")]
    for i in range(8):
        a(b1_.lines[i][1], b2_.lines[i][1])
        if i < 4: a(dpp[i])
    for i, ln in enumerate((0, 16, 32, 48)): a(f"v_readlane_b32 s{72+i}, v{P+4}, {ln}")
    RZ = 24
    a(f"v_mul_f32 v{T+1}, v{P}, v{T}", f"v_mul_f32 v{T+2}, v{P+1}, v{T}")
    a("s_max_u32 s72, s72, s73", "s_max_u32 s74, s74, s75", "s_max_u32 s72, s72, s74", "s_lshr_b32 s72, s72, 7")
    a("s_max_u32 s72, s72, 1", "s_min_u32 s72, s72, 250")
    a("s_sub_u32 s73, 253, s72", "s_lshl_b32 s73, s73, 23")
    a("s_add_u32 s74, s72, 2", "s_lshl_b32 s74, s74, 23")
    a("s_mov_b32 s60, s46", "s_mov_b32 s61, s47")
    a(f"v_mul_f32 v{RZ}, {f32(-L2E)}, v{T+1}")
    a(f"v_mul_f32 v{RZ+1}, 0.15915494, v{T+2}")
    a(f"v_rndne_f32 v{T+1}, v{RZ+1}", f"v_sub_f32 v{RZ+1}, v{RZ+1}, v{T+1}")
    a(f"ds_write_b32 v12, v{RZ}", f"ds_write_b32 v12, v{RZ+1} offset:64")
    a(f"v_mul_f32 v{RZ+2}, s73, v{P+2}", f"v_mul_f32 v{RZ+3}, s73, v{P+3}")
    a(f"v_mul_f32 v{P+5}, s74, v{T}")
    a(f"v_cvt_pk_f16_f32 v{RZ+4}, v{RZ+2}, v{RZ+3}")
    a(f"v_readfirstlane_b32 s66, v{P+5}")
    U3 = 32
    K3 = ((1, 256.0), (2, 512.0), (3, 1536.0))
    for k, c in K3: t = U3 + 4*(k-1); a(f"v_mul_f32 v{t}, {f32(c)}, v{RZ}", f"v_mul_f32 v{t+1}, {f32(c)}, v{RZ+1}")
    for k, c in K3: t = U3 + 4*(k-1); a(f"v_exp_f32 v{t}, v{t}", f"v_fract_f32 v{t+1}, v{t+1}")
    for k, c in K3: t = U3 + 4*(k-1); a(f"v_cos_f32 v{t+2}, v{t+1}", f"v_sin_f32 v{t+3}, v{t+1}")
    for k, c in K3: t = U3 + 4*(k-1); a(f"v_mul_f32 v{t+2}, v{t}, v{t+2}", f"v_mul_f32 v{t+3}, v{t}, v{t+3}")
    for k, c in K3: t = U3 + 4*(k-1); a(f"v_mul_f32 v{t}, v{RZ+3}, v{t+3}", f"v_mul_f32 v{t+1}, v{RZ+3}, v{t+2}")
    for k, c in K3: t = U3 + 4*(k-1); a(f"v_fma_f32 v{t}, v{RZ+2}, v{t+2}, -v{t}", f"v_fmac_f32 v{t+1}, v{RZ+2}, v{t+3}")
    for k, c in K3: t = U3 + 4*(k-1); a(f"v_cvt_pk_f16_f32 v{RZ+4+k}, v{t}, v{t+1}")
    for i, r in enumerate((RZ + 4, RZ + 5, RZ + 6, RZ + 7)): a(f"ds_write_b32 v12, v{r} offset:{128 + 64*i}")
    kloop(a, 4, "KF_KLOOP")
    a.stamp(3)
    a("s_xor_b32 s76, s12, 1", f"s_mul_i32 s76, s76, {A_STRIDE}", f"s_add_u32 s76, s76, {LDS_A}")
    a("v_add_u32 v12, s64, v11", "v_add_u32 v13, s76, v11", "v_xor_b32 v5, 4, v7")
    a("s_cmp_eq_u32 s14, 0", "s_cbranch_scc1 KF_NOSWAP")
    for i in range(8): a(f"v_swap_b32 v{KA+i}, v{KA+8+i}")
    a("KF_NOSWAP:")
    for k in range(2): a(f"ds_write_b128 v12, {vr(KA+8+4*k,4)} offset:{1024*k}")
    a(f"ds_write_b32 v7, v6 offset:{PAIR1}")
    a("s_lshl_b32 s8, s14, 10", "s_add_u32 s8, s8, s76")
    a("v_lshlrev_b32 v15, 3, v10", "v_lshl_add_u32 v15, v9, 5, v15", "v_add_u32 v14, s8, v15")
    spin4(a, 8, STAT, 16, 9, sleep=1)
    a(f"s_setprio {UPRIO}")
    UR = 24; SS = 32; UT = 64
    a("v_lshrrev_b32 v80, 2, v9", "v_lshl_add_u32 v80, v10, 3, v80")
    a("s_and_b32 s8, s81, 1", "s_lshl_b32 s8, s8, 3", "s_lshl_b32 s9, s12, 1", "s_add_u32 s8, s8, s9", "v_bfe_u32 v81, v9, 1, 1", "v_add_u32 v81, s8, v81")
    a("v_and_b32 v82, 1, v9", "v_lshlrev_b32 v82, 3, v82")
    for hf in range(2):
        if hf: a("v_add_u32 v80, 4, v80")
        a("v_and_b32 v83, 15, v80", "v_xor_b32 v83, v83, v81", "v_lshl_add_u32 v83, v83, 4, v82", "v_lshl_add_u32 v83, v80, 8, v83")
        for rr in range(2): a(f"ds_read_b64_tr_b16 {vr(UR + 4*rr + 2*hf, 2)}, v83 offset:{8192*rr}")
    a(f"ds_write_b32 v7, v6 offset:{UDONE}")
    a("v_lshlrev_b32 v80, 6, v10", f"v_add_u32 v80, {LDS_STAT}, v80")
    for rr in range(2):
        for i in range(4): a(f"ds_read_b128 {vr(SS+16*rr+4*i,4)}, v80 offset:{256*rr + 16*i}")
    a("s_lshl_b32 s8, s81, 18", "s_lshl_b32 s9, s12, 16", "s_add_u32 s8, s8, s9", "s_lshl_b32 s9, s4, 7", "s_add_u32 s8, s8, s9", f"s_add_u32 s8, s8, {UU}")
    a("v_lshlrev_b32 v81, 12, v9", "v_lshl_add_u32 v81, v10, 4, v81")
    a("s_waitcnt lgkmcnt(8)")
    for i in range(8): a(f"v_lshlrev_b32 v{UT+2*i}, 16, v{UR+i}", f"v_and_b32 v{UT+2*i+1}, 0xffff0000, v{UR+i}")
    a("s_waitcnt lgkmcnt(0)")
    for i in range(16): a(f"v_fma_f32 v{UT+i}, v{UT+i}, v{SS+2*i}, v{SS+2*i+1}")
    for i in range(8): a(f"v_cvt_pk_f16_f32 v{UR+i}, v{UT+2*i}, v{UT+2*i+1}")
    a(f"buffer_store_dwordx4 {vr(UR,4)}, v81, s[56:59], s8 offen {ST}")
    a(f"buffer_store_dwordx4 {vr(UR+4,4)}, v81, s[56:59], s8 offen offset:64 {ST}")
    a("s_setprio 0")
    spin1(a, 5, PAIR1, 16, 10)
    for k in range(2): a(f"ds_read_b128 {vr(16+4*k,4)}, v13 offset:{1024*k}")
    a("s_waitcnt lgkmcnt(0)")
    for k in range(2):
        for e in range(4): a(f"v_add_f32 v{KA+4*k+e}, v{KA+4*k+e}, v{16+4*k+e}")
        a(f"v_cvt_pk_f16_f32 v{24+2*k}, v{KA+4*k}, v{KA+4*k+1}", f"v_cvt_pk_f16_f32 v{25+2*k}, v{KA+4*k+2}, v{KA+4*k+3}")
        a(f"ds_write_b64 v14, {vr(24+2*k,2)} offset:{512*k}")
    a(f"ds_write_b32 v7, v6 offset:{PAIR2}")
    VA, VB, VU, VS, VZ, VC = 144, 145, 146, 147, 148, 149
    a(f"s_mul_i32 s64, s13, {CH_STRIDE}", f"s_add_u32 s64, s64, {LDS_CONV}")
    a(f"v_add_u32 v17, {UOFF}, v11")
    a("v_bfe_u32 v18, v0, 1, 2", f"v_mul_u32_u24 v18, {KCOPY}, v18", "v_and_b32 v19, 1, v0", "v_lshl_add_u32 v18, v19, 4, v18")
    a("v_cmp_gt_u32 vcc, 32, v0", "v_cndmask_b32 v17, v18, v17, vcc", f"v_add_u32 v{VZ}, s64, v17")
    a("s_lshl_b32 s10, s14, 8")
    a("v_lshrrev_b32 v19, 2, v9", f"v_mul_u32_u24 v19, {KCOPY}, v19", "v_and_b32 v18, 3, v9", "v_lshl_add_u32 v19, v18, 3, v19")
    a("v_lshlrev_b32 v18, 4, v10", "v_sub_u32 v19, v19, v18", f"s_add_u32 s8, s64, {32 + 480 - 8 - 192}", "s_sub_u32 s8, s8, s10", f"v_add_u32 v{VA}, s8, v19")
    a("v_lshl_add_u32 v19, v9, 5, v18", f"s_add_u32 s8, s64, {UOFF}", "s_add_u32 s8, s8, s10", f"v_add_u32 v{VB}, s8, v19")
    a(f"v_mov_b32 v{VS}, v15", f"s_add_u32 s8, s64, {UOFF + 480}", "s_lshl_b32 s10, s14, 11", "s_add_u32 s75, s8, s10", f"v_add_u32 v{VU}, s75, v{VS}")
    a("s_lshl_b32 s8, s14, 10", "s_add_u32 s8, s8, s64", "s_add_u32 s8, s8, 32", f"v_add_u32 v{VC}, s8, v11")
    a("s_waitcnt vmcnt(0)")
    publish(a, "KF_PUBU", CNT_U, "s71", 159, 16)
    a("v_mov_b32 v150, v134", "v_mov_b32 v151, v135")
    a.stamp(4)
    spin1(a, 5, PAIR2, 16, 10)
    for k in range(15): a(f"ds_read_u16 v{E+k}, v{E+k}")
    a("v_cmp_eq_u32 vcc, 0, v0", "s_cmp_eq_u32 s14, 0", "s_cselect_b64 vcc, vcc, 0")
    a("s_waitcnt lgkmcnt(0)")
    for k in range(3): a(f"v_cndmask_b32 v{E+k}, v{E+k}, 0, vcc")
    near = lambda e: E + 3 + e
    far = lambda e: E + 11 + (0 if e == -3 else 1 if e <= 3 else 2 if e == 4 else 3)
    KP = 48
    for ci, fn in enumerate((near, far)):
        for sft in range(4):
            o = KP + 16*ci + 4*sft
            for j in range(4): a(f"v_lshl_or_b32 v{o+j}, v{fn(2*j+1-sft)}, 16, v{fn(2*j-sft)}")
    CA = 16
    for i in range(32): a(f"v_mov_b32 v{CA+i}, 0")
    a("s_cmp_lg_u32 s12, 0", "s_cbranch_scc1 KF_AW1")
    if UPOLL: spin4(a, 8, FREE, 88, 8, target=UPOLL, sleep=4)
    gpoll(a, "KF_POLLU", 4, "s52", 151, 89, 8, first_sleep=False)
    a(f"ds_write_b32 v8, v6 offset:{U_OK}")
    a("KF_AW1:")
    spin1(a, 8, U_OK, 88, 8, sleep=4)
    a("s_lshl_b32 s11, s15, 12", "s_lshl_b32 s10, s14, 11", "s_add_u32 s11, s11, s10", f"s_add_u32 s11, s11, {UU}")
    for i in range(2): a(f"buffer_load_dwordx4 {vr(88+4*i,4)}, v11, s[56:59], s11 offen offset:{1024*i} sc1")
    a("v_add_u32 v96, s75, v11")
    spin4(a, 8, FREE, 100, 8, target=16, sleep=1)
    a(f"s_setprio {CPRIO}")
    for ci in range(2):
        for sft in range(4): a(f"ds_write_b128 v{VC}, {vr(KP + 16*ci + 4*sft, 4)} offset:{sft*KCOPY + 2048*ci}")
    a("s_mov_b32 exec_lo, 0x3fffffff", "s_mov_b32 exec_hi, 0xff")
    a(f"ds_write_b128 v{VZ}, {vr(CA,4)}")
    a("s_mov_b64 exec, -1")
    a("s_waitcnt vmcnt(0)")
    for i in range(2): a(f"ds_write_b128 v96, {vr(88+4*i,4)} offset:{1024*i}")
    a(f"ds_write_b32 v7, v6 offset:{PAIR3}")
    spin1(a, 5, PAIR3, 100, 8)
    a.stamp(5)
    AF = 48; BF = 112
    def ard(c): return [(f"ds_read_b64_tr_b16 {vr(AF + 32*(c & 1) + 4*m + 2*h, 2)}, v{VA} offset:{512*m + 8*(1 - h) + 64*(3 - c)}", ("a", c, m)) for m in range(7, -1, -1) for h in range(2)]
    def brd(c, i): return (f"ds_read_b128 {vr(BF + 4*i, 4)}, v{VB} offset:{512*i + 64*c}", ("b", c, i))
    a.lg = []
    a.ds(*brd(0, 0))
    for x in ard(0): a.ds(*x)
    for i in range(1, 8): a.ds(*brd(0, i))
    for c in range(4):
        fill = ard(c + 1) if c < 3 else []
        for step in range(8):
            for t in range(7, step - 1, -1):
                need_ = [("a", c, t - step), ("b", c, step)]
                pos = [max(j for j, tg in enumerate(a.lg) if tg == x) for x in need_ if x in a.lg]
                if pos: a.lg_wait(a.lg[max(pos)])
                d = vr(CA + 4*t, 4)
                a(f"v_mfma_f32_16x16x32_f16 {d}, {vr(AF + 32*(c & 1) + 4*(t - step), 4)}, {vr(BF + 4*step, 4)}, {d}")
                if t == step and c < 3: a.ds(*brd(c + 1, step))
                elif fill: a.ds(*fill.pop(0))
        assert not fill
    a.stamp(6)
    a("s_lshl_b32 s10, s12, 12", f"s_add_u32 s10, s10, {LDS_EX}", "v_add_u32 v96, s10, v11")
    a("s_xor_b32 s74, s12, 1", "s_lshl_b32 s74, s74, 12", f"s_add_u32 s74, s74, {LDS_EX}", "v_add_u32 v97, s74, v11")
    a("s_nop 3")
    a("s_cmp_eq_u32 s14, 0", "s_cbranch_scc1 KF_NOSWAP2")
    for i in range(16): a(f"v_swap_b32 v{CA+i}, v{CA+16+i}")
    a("KF_NOSWAP2:")
    for k in range(4): a(f"ds_write_b128 v96, {vr(CA+16+4*k,4)} offset:{1024*k}")
    a(f"ds_write_b32 v7, v6 offset:{PAIR4}")
    FR = 48
    for k in range(4): a(f"ds_read_b64 {vr(FR + 2*k, 2)}, v{VU} offset:{512*k}")
    a("s_lshl_b32 s8, s15, 12", "s_lshl_b32 s10, s14, 11", "s_add_u32 s8, s8, s10", f"s_add_u32 s8, s8, {AO}")
    a("v_lshrrev_b32 v98, 1, v10", "v_lshlrev_b32 v98, 4, v98", "v_lshl_add_u32 v98, v9, 5, v98", "v_and_b32 v99, 1, v10", "v_lshl_add_u32 v98, v99, 9, v98")
    spin1(a, 5, PAIR4, 60, 9)
    PB = FR + 32; T = FR + 16
    for k in range(4): a(f"ds_read_b128 {vr(PB+4*k,4)}, v97 offset:{1024*k}")
    for k in range(4):
        for e in range(4): a(f"v_fma_mix_f32 v{T+4*k+e}, v{FR+2*k+(e>>1)}, s79, 0 op_sel:[{e&1},0,0] op_sel_hi:[1,0,0]")
    for k in range(4):
        a(f"s_waitcnt lgkmcnt({3-k})")
        for e in range(4): a(f"v_add_f32 v{CA+4*k+e}, v{CA+4*k+e}, v{PB+4*k+e}")
        for e in range(4): a(f"v_fmac_f32 v{T+4*k+e}, s66, v{CA+4*k+e}")
        for h in range(2): a(f"v_cvt_pk_bf16_f32 v{FR+2*k+h}, v{T+4*k+2*h}, v{T+4*k+2*h+1}")
        if k & 1:
            o = FR + 2*(k - 1)
            a(f"v_permlane16_swap_b32 v{o}, v{o+2}", f"v_permlane16_swap_b32 v{o+1}, v{o+3}")
            a(f"buffer_store_dwordx4 {vr(o,4)}, v98, s[56:59], s8 offen offset:{512*(k-1)} sc1")
    a("s_setprio 0")
    a("v_lshrrev_b32 v22, 3, v0", "v_and_b32 v23, 7, v0", "v_lshlrev_b32 v24, 12, v22", "v_lshl_add_u32 v24, v23, 4, v24")
    a(f"v_mul_u32_u24 v25, {AOROW}, v22", "v_lshl_add_u32 v25, v23, 4, v25", "v_add_u32 v25, s74, v25")
    a("s_lshl_b32 s9, s68, 18", "s_lshl_b32 s10, s12, 16", "s_add_u32 s9, s9, s10", "s_lshl_b32 s10, s67, 7", "s_add_u32 s9, s9, s10", f"s_add_u32 s9, s9, {AO}")
    a("s_add_u32 s10, s9, 0x8000")
    a("s_waitcnt vmcnt(0)")
    publish(a, "KF_PUBA", CNT_A, "s78", 150, 26)
    a("s_mov_b32 s54, s9")
    final_loads(0)
    a("s_mov_b32 s9, s54")
    a.stamp(7)
    a("s_cmp_lg_u32 s12, 0", "s_cbranch_scc1 KF_AW3")
    if LATE: spin1(a, 8, LATEF, 26, 8, sleep=4)
    gpoll(a, "KF_POLLA", 4, "s53", 1, 27, 8, first_sleep=False)
    a(f"ds_write_b32 v8, v6 offset:{A_OK}")
    a("KF_AW3:")
    spin1(a, 8, A_OK, 26, 8, sleep=2)
    a("buffer_load_dwordx4 v[28:31], v24, s[56:59], s9 offen sc1", "buffer_load_dwordx4 v[32:35], v24, s[56:59], s10 offen sc1")
    a("s_waitcnt vmcnt(0)")
    a("ds_write_b128 v25, v[28:31]", f"ds_write_b128 v25, v[32:35] offset:{8*AOROW}")
    a("s_mov_b32 s13, 0")
    a("s_branch KF_FINAL")
    a("KF_FIN:")
    a.stamp_flush(DBG)
    a("KF_END:", "s_endpgm", "CODE_END:")
    return N, 168, F_LDS, 768
```

```python
import sys
from asmlib import *
from layout import *
import kf
def build(path, stamps=False):
    a = Asm(); a.stamps = stamps
    n, v, l, t = kf.gen_f(a)
    hdr = open(f"cdna_kernels/{NAME}.s.ref").read().split("; Override launch")[0]
    out = hdr + f"; @launch grid=(256,1,1) block=({t},1,1) lds={l}\n"
    out += '.amdgcn_target "amdgcn-amd-amdhsa--gfx950"\n.text\n' + a.render()
    out += '.section .rodata,"a"\n' + descriptor(n, v)
    open(path, "w").write(out)
if __name__ == "__main__":
    build("fused.s")
    build("fused_st.s", True)
```

```python
from asmlib import *
from layout import *
from k1 import srd, f32, spin1

KCOPY = 4160
UOFF = 4 * KCOPY
CH_STRIDE = 4 * KCOPY + 4608
LDS_PART = 2 * CH_STRIDE
PROW = 272
LDS_AO = LDS_PART + 4 * 64 * PROW
AOROW = 144
LDS_EX = LDS_AO + 64 * AOROW
LDS_FLAG = LDS_EX + 16384
K2_LDS = LDS_FLAG + 64
DEPTH = 8
SPIN_MAX = 100000
NOISE = 0
LATE = 10

def gen_k2(a, stamps=False):
    N = "k2_kernel"
    a(f".globl {N}", ".p2align 8", f".type {N},@function", f"{N}:")
    a("s_cmp_ge_u32 s2, 256", "s_cbranch_scc1 K2_END")
    a("s_load_dwordx2 s[16:17], s[0:1], 0", "s_load_dwordx2 s[28:29], s[0:1], 48", "s_load_dwordx2 s[34:35], s[0:1], 80", "s_load_dwordx4 s[36:39], s[0:1], 88", "s_load_dwordx2 s[40:41], s[0:1], 112")
    a.stamp_init(); a.stamp(0)
    a("v_lshrrev_b32 v1, 6, v0", "v_and_b32 v0, 63, v0", "v_readfirstlane_b32 s3, v1")
    a("v_and_b32 v9, 15, v0", "v_lshrrev_b32 v10, 4, v0", "v_lshlrev_b32 v11, 4, v0")
    a("v_mov_b32 v2, 0", "v_lshlrev_b32 v3, 2, v9", f"v_add_u32 v3, {LDS_FLAG}, v3", "ds_write_b32 v3, v2")
    a("s_and_b32 s8, s2, 7", "s_lshr_b32 s9, s2, 3")
    a("s_lshl_b32 s4, s8, 2", "s_lshr_b32 s10, s9, 3", "s_add_u32 s4, s4, s10")
    a("s_and_b32 s5, s9, 7")
    a("s_lshl_b32 s6, s8, 5", "s_add_u32 s6, s6, s9")
    a("s_and_b32 s12, s3, 3")
    a("s_lshr_b32 s13, s3, 2")
    a("s_lshl_b32 s14, s5, 7", "s_lshl_b32 s15, s13, 6", "s_add_u32 s14, s14, s15")
    a("s_lshl_b32 s15, s4, 6", "s_lshl_b32 s10, s12, 4", "s_add_u32 s15, s15, s10")
    a("s_waitcnt lgkmcnt(0)")
    a.stamp(1)
    a("s_barrier")
    a("v_lshlrev_b32 v2, 4, v10", "v_add_u32 v2, s14, v2")
    a("v_add_u32 v3, s15, v9", "v_lshl_add_u32 v3, v3, 10, v2")
    srd(a, 56, 40, WS_BYTES)
    a("s_cmp_ge_u32 s3, 4", "s_cbranch_scc1 K2_G")

    XR = 4
    a.vm_reset()
    a("s_setprio 3")
    a("s_lshr_b32 s13, s12, 1", "s_and_b32 s14, s12, 1")
    a("s_lshl_b32 s15, s6, 1", "s_add_u32 s15, s15, s13")
    a(f"s_mul_i32 s64, s13, {CH_STRIDE}")
    a("s_lshl_b32 s10, s14, 11")
    a(f"s_mul_i32 s8, s15, {KROW}", f"s_add_u32 s8, s8, {KC}")
    a("s_lshl_b32 s65, s12, 12", f"s_add_u32 s65, s65, {LDS_EX}")
    a("s_add_u32 m0, s65, 2048")
    for k in range(2): a.vmem(f"buffer_load_dwordx4 v11, s[56:59], s8 offen offset:{1024*k} lds", "tab")
    a("s_add_u32 s11, s8, 2044", "s_load_dword s66, s[40:41], s11")
    a("s_add_u32 s9, s64, s10")
    a("s_lshl_b32 s11, s15, 12", "s_add_u32 s11, s11, s10", f"s_add_u32 s11, s11, {UU}", f"s_add_u32 m0, s9, {UOFF + 480}")
    for i in range(2): a.vmem(f"buffer_load_dwordx4 v11, s[56:59], s11 offen offset:{1024*i} lds", "k")
    a("s_lshl_b32 s8, s6, 2", "s_load_dword s67, s[28:29], s8")
    a.vmem(f"global_load_dwordx4 {vr(XR,4)}, v3, s[16:17]", "x")
    a.vmem(f"global_load_dwordx4 v[12:15], v2, s[36:37]", "x")
    for i in range(4): a(f"v_mov_b32 v{20+i}, 0")
    a(f"v_add_u32 v17, {UOFF}, v11")
    a("v_bfe_u32 v18, v0, 1, 2", f"v_mul_u32_u24 v18, {KCOPY}, v18", "v_and_b32 v19, 1, v0", "v_lshl_add_u32 v18, v19, 4, v18")
    a("v_cmp_gt_u32 vcc, 32, v0", "v_cndmask_b32 v17, v18, v17, vcc", "v_add_u32 v17, s64, v17")
    a("s_mov_b32 exec_lo, 0x3fffffff", "s_mov_b32 exec_hi, 0xff")
    a("ds_write_b128 v17, v[20:23]")
    a("s_mov_b64 exec, -1")
    VA, VB, VU, VS, VF = 200, 201, 202, 203, 204
    a("s_lshl_b32 s10, s14, 8")
    a("v_lshrrev_b32 v19, 2, v9", f"v_mul_u32_u24 v19, {KCOPY}, v19", "v_and_b32 v18, 3, v9", "v_lshl_add_u32 v19, v18, 3, v19")
    a("v_lshlrev_b32 v18, 4, v10", "v_sub_u32 v19, v19, v18", f"s_add_u32 s8, s64, {32 + 480 - 8}", "s_sub_u32 s8, s8, s10", f"v_add_u32 v{VA}, s8, v19")
    a("v_lshl_add_u32 v19, v9, 5, v18", f"s_add_u32 s8, s64, {UOFF}", "s_add_u32 s8, s8, s10", f"v_add_u32 v{VB}, s8, v19")
    a("v_lshlrev_b32 v18, 3, v10", f"v_lshl_add_u32 v{VS}, v9, 5, v18", f"s_add_u32 s8, s64, {UOFF + 480}", "s_lshl_b32 s10, s14, 11", "s_add_u32 s8, s8, s10", f"v_add_u32 v{VU}, s8, v{VS}")
    a("s_lshl_b32 s10, s12, 2", f"s_add_u32 s10, s10, {LDS_FLAG}", f"v_mov_b32 v{VF}, s10", f"v_xor_b32 v{VF+1}, 4, v{VF}", f"v_mov_b32 v{VF+2}, 1")
    CA = 16
    FR = 48
    E = 112
    a("s_add_u32 s78, s65, 2048")
    a("s_lshl_b32 s8, s14, 9", "v_lshl_add_u32 v88, v0, 3, s8", "v_cvt_f32_u32 v88, v88")
    offs = list(range(-3, 8)) + [1024 + e for e in (-3, 0, 4, 5)] + [0]
    for k in range(0, 16, 2):
        a(f"v_add_f32 v89, {f32(offs[k])}, v88", f"v_add_f32 v90, {f32(offs[k+1])}, v88")
        a("v_cvt_pk_bf16_f32 v89, v89, v90")
        a("v_and_b32 v90, 0xffff0000, v89", "v_lshlrev_b32 v89, 16, v89", "v_cvt_i32_f32 v89, v89", "v_cvt_i32_f32 v90, v90")
        for r, kk in ((89, k), (90, k + 1)):
            if kk == 15: continue
            a(f"v_lshrrev_b32 v91, 2, v{r}", "v_add_u32 v91, 384, v91")
            if kk < 11: a(f"v_min_i32 v91, v{r}, v91")
            a(f"v_lshl_add_u32 v{E+kk}, v91, 1, s78")
    a.stamp(2)
    a.vm_wait("tab")
    a("s_waitcnt lgkmcnt(0)")
    for k in range(15): a(f"ds_read_u16 v{E+k}, v{E+k}")
    a.fstamp(1)
    a("s_lshl_b32 s8, s14, 10", "s_add_u32 s8, s8, s64", "s_add_u32 s8, s8, 32", "v_add_u32 v91, s8, v11")
    a("v_cmp_eq_u32 vcc, 0, v0", "s_cmp_eq_u32 s14, 0", "s_cselect_b64 vcc, vcc, 0")
    a("s_waitcnt lgkmcnt(4)")
    for k in range(3): a(f"v_cndmask_b32 v{E+k}, v{E+k}, 0, vcc")
    near = lambda e: E + 3 + e
    far = lambda e: E + 11 + (0 if e == -3 else 1 if e <= 3 else 2 if e == 4 else 3)
    for ci, fn in enumerate((near, far)):
        if ci: a("s_waitcnt lgkmcnt(4)")
        for sft in range(4):
            o = 32 + 16*ci + 4*sft
            for j in range(4): a(f"v_lshl_or_b32 v{o+j}, v{fn(2*j+1-sft)}, 16, v{fn(2*j-sft)}")
            a(f"ds_write_b128 v91, {vr(o,4)} offset:{sft*KCOPY + 2048*ci}")
    a.vm_wait("k")
    a(f"ds_write_b32 v{VF}, v{VF+2}")
    for i in range(32): a(f"v_mov_b32 v{CA+i}, 0")
    spin1(a, VF + 1, 0, 64, 8)
    a.stamp(3)
    def rd(st):
        L = []
        for i in range(8):
            L.append(f"ds_read_b128 {vr(FR + 64*st + 32 + 4*i, 4)}, v{VB} offset:{512*i}")
            L.append(f"ds_read_b64_tr_b16 {vr(FR + 64*st + 4*i, 2)}, v{VA} offset:{512*i + 8}")
            L.append(f"ds_read_b64_tr_b16 {vr(FR + 64*st + 4*i + 2, 2)}, v{VA} offset:{512*i}")
        L.append(f"v_subrev_u32 v{VA}, 64, v{VA}")
        L.append(f"v_add_u32 v{VB}, 64, v{VB}")
        return L
    def mf(st):
        L = []
        for step in range(8):
            for t in range(step, 8):
                d = vr(CA + 4*t, 4)
                L.append(f"v_mfma_f32_16x16x32_f16 {d}, {vr(FR + 64*st + 4*(t - step), 4)}, {vr(FR + 64*st + 32 + 4*step, 4)}, {d}")
        return L
    for l in rd(0): a(l)
    a("s_mov_b32 s8, 2")
    a("K2_CL:")
    for st in range(2):
        a("s_waitcnt lgkmcnt(0)")
        R, M = rd(1 - st), mf(st)
        for i, m in enumerate(M):
            a(m)
            if i < len(R): a(R[i])
    a("s_sub_u32 s8, s8, 1", "s_cmp_lg_u32 s8, 0", "s_cbranch_scc1 K2_CL")
    a.stamp(4)
    a("s_lshl_b32 s10, s12, 12", f"s_add_u32 s10, s10, {LDS_EX}", "v_add_u32 v196, s10, v11", "v_xor_b32 v197, 0x1000, v196" if LDS_EX % 8192 == 0 else "s_xor_b32 s9, s12, 1")
    if LDS_EX % 8192: a("s_lshl_b32 s9, s9, 12", f"s_add_u32 s9, s9, {LDS_EX}", "v_add_u32 v197, s9, v11")
    a("s_nop 3")
    a("s_cmp_eq_u32 s14, 0", "s_cbranch_scc1 K2_NOSWAP")
    for i in range(16): a(f"v_swap_b32 v{CA+i}, v{CA+16+i}")
    a("K2_NOSWAP:")
    for k in range(4): a(f"ds_write_b128 v196, {vr(CA+16+4*k,4)} offset:{1024*k}")
    a("s_waitcnt lgkmcnt(0)", f"ds_write_b32 v{VF}, v{VF+2} offset:16")
    for k in range(4): a(f"ds_read_b64 {vr(FR + 2*k, 2)}, v{VU} offset:{512*k}")
    a("s_lshl_b32 s10, s13, 4", "s_lshr_b32 s67, s67, s10", "s_lshl_b32 s67, s67, 16")
    a("s_lshl_b32 s8, s15, 12", "s_lshl_b32 s10, s14, 11", "s_add_u32 s8, s8, s10", f"s_add_u32 s8, s8, {AO}")
    spin1(a, VF + 1, 16, 60, 9)
    PB = FR + 32
    for k in range(4): a(f"ds_read_b128 {vr(PB+4*k,4)}, v197 offset:{1024*k}")
    T = FR + 16
    for k in range(4):
        for e in range(4):
            a(f"v_fma_mix_f32 v{T+4*k+e}, v{FR+2*k+(e>>1)}, s67, 0 op_sel:[{e&1},0,0] op_sel_hi:[1,0,0]")
    for k in range(4):
        a(f"s_waitcnt lgkmcnt({3-k})")
        for e in range(4): a(f"v_add_f32 v{CA+4*k+e}, v{CA+4*k+e}, v{PB+4*k+e}")
        for e in range(4): a(f"v_fmac_f32 v{T+4*k+e}, s66, v{CA+4*k+e}")
        for h in range(2): a(f"v_cvt_pk_bf16_f32 v{FR+2*k+h}, v{T+4*k+2*h}, v{T+4*k+2*h+1}")
        a(f"buffer_store_dwordx2 {vr(FR+2*k,2)}, v{VS}, s[56:59], s8 offen offset:{512*k} sc1")
    a("s_setprio 0")
    a("s_lshl_b32 s8, s15, 2", "s_lshl_b32 s9, s14, 11", "s_add_u32 s8, s8, s9", f"s_add_u32 s8, s8, {FLG}")
    a("v_mov_b32 v20, 1", "v_mov_b32 v21, 0")
    a("s_waitcnt vmcnt(0)")
    a("s_mov_b64 exec, 1")
    a("buffer_store_dword v20, v21, s[56:59], s8 offen sc1")
    a("s_mov_b64 exec, -1")
    a.stamp(5)
    a("s_lshr_b32 s8, s4, 4", "s_lshl_b32 s8, s8, 11", "s_lshl_b32 s9, s5, 8", "s_add_u32 s8, s8, s9", "s_lshl_b32 s9, s12, 6", "s_add_u32 s8, s8, s9", f"s_add_u32 s8, s8, {FLG}")
    a("v_lshlrev_b32 v21, 2, v9")
    a("v_lshrrev_b32 v22, 3, v0", "v_and_b32 v23, 7, v0", "v_lshlrev_b32 v24, 12, v22", "v_lshl_add_u32 v24, v23, 4, v24")
    a(f"v_mul_u32_u24 v25, {AOROW}, v22", "v_lshl_add_u32 v25, v23, 4, v25", f"s_mul_i32 s10, s12, {16*AOROW}", f"s_add_u32 s10, s10, {LDS_AO}", "v_add_u32 v25, s10, v25")
    a("s_lshl_b32 s9, s5, 18", "s_lshl_b32 s10, s12, 16", "s_add_u32 s9, s9, s10", "s_lshl_b32 s10, s4, 7", "s_add_u32 s9, s9, s10", f"s_add_u32 s9, s9, {AO}")
    a("s_add_u32 s10, s9, 0x8000")
    a(f"s_mov_b32 s11, {SPIN_MAX}")
    if LATE: spin1(a, VF, 32, 26, 13, sleep=2)
    a("K2_POLL:")
    a("buffer_load_dword v20, v21, s[56:59], s8 offen sc1", "s_waitcnt vmcnt(0)")
    a("v_cmp_ne_u32 vcc, 1, v20", "s_sub_u32 s11, s11, 1", "s_cbranch_scc1 K2_POLLED", "s_nop 2", "s_cbranch_vccz K2_POLLED", "s_sleep 8", "s_branch K2_POLL")
    a("K2_POLLED:")
    a("buffer_load_dwordx4 v[28:31], v24, s[56:59], s9 offen sc1")
    a("buffer_load_dwordx4 v[32:35], v24, s[56:59], s10 offen sc1")
    a("s_waitcnt vmcnt(0)")
    a.stamp(6)
    a("ds_write_b128 v25, v[28:31]", f"ds_write_b128 v25, v[32:35] offset:{8*AOROW}")
    a("s_branch K2_FINAL")

    a("K2_G:")
    a.vm_reset()
    ACC = 16
    PF = 80
    WF = 144
    VW, VT = 160, 162
    srd(a, 52, 34, 1376 * 512 * 2)
    a("s_mul_i32 s8, s12, 22", "s_cmp_eq_u32 s12, 3", "s_subb_u32 s8, s8, 0")
    a("s_mul_i32 s9, s4, 172", "s_add_u32 s9, s9, s8", "s_lshl_b32 s68, s9, 10", f"s_add_u32 s68, s68, {HF}", f"s_add_u32 s69, s68, {86*1024}")
    a("s_lshl_b32 s70, s8, 14", "s_lshl_b32 s9, s5, 7", "s_add_u32 s70, s70, s9")
    a(f"s_mul_i32 s64, s12, {64*PROW}", f"s_add_u32 s64, s64, {LDS_PART}")
    a("v_lshrrev_b32 v1, 3, v0", "v_and_b32 v8, 7, v0", "v_bfe_u32 v16, v0, 4, 1", "v_lshlrev_b32 v16, 2, v16", "v_xor_b32 v8, v8, v16")
    a("v_lshlrev_b32 v1, 10, v1", f"v_lshl_add_u32 v{VW}, v8, 4, v1", f"v_add_u32 v{VW+1}, 8192, v{VW}")
    def ld(n):
        b = PF + 8 * (n % DEPTH)
        L = []
        for i in range(2):
            L.append(([], f"buffer_load_dwordx4 {vr(b + 4*i, 4)}, v11, s[56:59], s{68+i} offen offset:{(n & 3) * 1024}", []))
        L.append(([f"s_add_u32 m0, s64, {(n % DEPTH) * 2048}"], f"buffer_load_dwordx4 v{VW}, s[52:55], s70 offen lds", []))
        post = ["s_add_u32 s70, s70, 16384"]
        if n & 3 == 3: post += ["s_add_u32 s68, s68, 4096", "s_add_u32 s69, s69, 4096"]
        L.append(([f"s_add_u32 m0, s64, {(n % DEPTH) * 2048 + 1024}"], f"buffer_load_dwordx4 v{VW+1}, s[52:55], s70 offen lds", post))
        return [(n,) + x for x in L]
    def emit(x):
        n, pre, ins, post = x
        a(*pre); a.vmem(ins, ("g", n)); a(*post)
    for n in range(DEPTH):
        for x in ld(n): emit(x)
    a.vmem(f"global_load_dwordx4 {vr(XR,4)}, v3, s[16:17]", "x")
    a.vmem(f"global_load_dwordx4 v[12:15], v2, s[36:37]", "x")
    a("v_lshrrev_b32 v1, 1, v10", "v_lshrrev_b32 v8, 2, v9", "v_lshl_add_u32 v1, v1, 3, v8", "v_lshlrev_b32 v1, 7, v1")
    a("v_and_b32 v8, 1, v10", "v_lshl_add_u32 v1, v8, 5, v1", "v_and_b32 v8, 3, v9", "v_lshl_add_u32 v1, v8, 3, v1")
    a("v_bfe_u32 v8, v9, 3, 1", "v_lshl_add_u32 v1, v8, 6, v1", f"v_add_u32 v{VT}, s64, v1", "v_xor_b32 v1, 64, v1", f"v_add_u32 v{VT+1}, s64, v1")
    a("v_and_b32 v1, 31, v0", f"v_mul_u32_u24 v1, {PROW}, v1", "v_lshrrev_b32 v8, 5, v0", "v_lshl_add_u32 v1, v8, 4, v1", "v_add_u32 v1, s64, v1")
    a("s_lshl_b32 s10, s12, 2", f"s_add_u32 s10, s10, {LDS_FLAG + 32}", f"v_mov_b32 v{VT+2}, s10", f"v_mov_b32 v{VT+3}, 1")
    def trs(n):
        for dt in range(2):
            for hf in range(2):
                a(f"ds_read_b64_tr_b16 {vr(WF + 8*(n & 1) + 4*dt + 2*hf, 2)}, v{VT+dt} offset:{(n % DEPTH) * 2048 + 512*hf}")
    a.stamp(2)
    a.vm_wait(("g", 0))
    a.stamp(3)
    trs(0)
    for n in range(22):
        b = PF + 8 * (n % DEPTH)
        if n + 1 < 22: a.vm_wait(("g", n + 1))
        a("s_waitcnt lgkmcnt(0)")
        if n + 1 < 22: trs(n + 1)
        if n == 11: a.stamp(5)
        if n == LATE: a(f"ds_write_b32 v{VT+2}, v{VT+3}")
        if n == 21: a("s_cmp_ge_u32 s12, 2", "s_cbranch_scc1 K2_GDONE")
        L = ld(n - 1 + DEPTH) if (n >= 1 and n - 1 + DEPTH < 22) else []
        for dt in range(2):
            for lt in range(2):
                d = vr(ACC + 32*dt + 16*lt, 16)
                a(f"v_mfma_f32_32x32x16_bf16 {d}, {vr(WF + 8*(n & 1) + 4*dt, 4)}, {vr(b + 4*lt, 4)}, {d if n else 0}")
                if L: emit(L.pop(0))
    a("K2_GDONE:")
    a("s_nop 7", "s_nop 3")
    a.stamp(4)
    for dt in range(2):
        for lt in range(2):
            for q in range(4):
                a(f"ds_write_b128 v1, {vr(ACC + 32*dt + 16*lt + 4*q, 4)} offset:{lt*32*PROW + dt*128 + q*32}")

    a("K2_FINAL:")
    a("s_lshr_b32 s13, s3, 2")
    a("s_lshl_b32 s8, s12, 4", "v_add_u32 v96, s8, v9", f"v_mul_u32_u24 v96, {PROW}, v96", "v_lshl_add_u32 v96, v10, 5, v96")
    a("s_lshl_b32 s8, s13, 7", f"s_add_u32 s8, s8, {LDS_PART}", "v_add_u32 v96, s8, v96")
    a("v_lshrrev_b32 v97, 2, v9", "v_lshl_add_u32 v97, v10, 3, v97", f"v_mul_u32_u24 v97, {AOROW}, v97", "v_and_b32 v98, 3, v9", "v_lshl_add_u32 v97, v98, 3, v97")
    a(f"s_mul_i32 s8, s13, {32*AOROW}", "s_lshl_b32 s9, s12, 5", "s_add_u32 s8, s8, s9", f"s_add_u32 s8, s8, {LDS_AO}", "v_add_u32 v97, s8, v97")
    XU = 80; BU = 88
    a("s_waitcnt vmcnt(0)")
    for i in range(4):
        a(f"v_lshlrev_b32 v{XU+2*i}, 16, v{XR+i}", f"v_and_b32 v{XU+2*i+1}, 0xffff0000, v{XR+i}")
        a(f"v_lshlrev_b32 v{BU+2*i}, 16, v{12+i}", f"v_and_b32 v{BU+2*i+1}, 0xffff0000, v{12+i}")
    for i in range(8): a(f"v_add_f32 v{XU+i}, v{XU+i}, v{BU+i}")
    a("s_waitcnt lgkmcnt(0)", "s_barrier")
    a.stamp(7)
    Q = 24
    a("ds_read_b64_tr_b16 v[20:21], v97", f"ds_read_b64_tr_b16 v[22:23], v97 offset:{4*AOROW}")
    for w in range(4):
        for h in range(2): a(f"ds_read_b128 {vr(Q + 8*w + 4*h, 4)}, v96 offset:{w*64*PROW + 16*h}")
    a("s_waitcnt lgkmcnt(8)")
    for i in range(4): a(f"v_lshlrev_b32 v{BU+2*i}, 16, v{20+i}", f"v_and_b32 v{BU+2*i+1}, 0xffff0000, v{20+i}")
    for i in range(4): a(f"v_pk_add_f32 {vr(XU+2*i,2)}, {vr(XU+2*i,2)}, {vr(BU+2*i,2)}")
    for w in range(4):
        a(f"s_waitcnt lgkmcnt({6 - 2*w})")
        for i in range(4): a(f"v_pk_add_f32 {vr(XU+2*i,2)}, {vr(XU+2*i,2)}, {vr(Q+8*w+2*i,2)}")
    for i in range(4): a(f"v_cvt_pk_bf16_f32 v{20+i}, v{XU+2*i}, v{XU+2*i+1}")
    a("global_store_dwordx4 v3, v[20:23], s[38:39]")
    a.stamp_flush(DBG + 0x40000)
    a("K2_END:", "s_endpgm", "CODE_END:")
    return N, 208, K2_LDS, 512
```

```python
import build, importlib, sys, layout, k1, k2
def b(n, **kw):
    old = {}
    for k, v in kw.items():
        m = k1 if hasattr(k1, k) else k2
        old[k] = (m, getattr(m, k)); setattr(m, k, v)
    build.build(f"st_v{n}.s", True, True)
    for k, (m, v) in old.items(): setattr(m, k, v)
b(1); b(2, RPG=2); b(3, LATE=0); b(4, DEPTH=6); b(5, ROT=0)
```
